```python
import torch

def _softmax(x, axis=-1):
    return torch.softmax(x, dim=axis)
def _gelu(x):
    return torch.nn.functional.gelu(x, approximate="tanh")
def _silu(x):
    return torch.nn.functional.silu(x)
def _sigmoid(x):
    return torch.sigmoid(x)
def _layernorm(x, axis=-1, eps=1e-5):
    m = x.mean(dim=axis, keepdim=True)
    v = x.var(dim=axis, keepdim=True, unbiased=False)
    return (x - m) / torch.sqrt(v + eps)
def _scatter_add(tgt, idx, src, axis=0):
    return tgt.clone().index_add_(axis, idx, src)
def _segment_sum(src, seg, n):
    out = torch.zeros((n,) + src.shape[1:], dtype=src.dtype)
    return out.index_add_(0, seg, src)
def _pad(x, pw):
    flat = tuple(v for pair in reversed(pw) for v in pair)
    return torch.nn.functional.pad(x, flat)

kernel_name = 'sequential_preLN__ssm_conv_s4d__glu_gated_swiglu__prompt'

def setup_inputs():

    _w = (lambda a: (lambda t: t.to(torch.bfloat16) if t.is_floating_point() else t)(torch.as_tensor(a)))
    def _A_setup():
        Bsz, L, D, N = 1, 2048, 512, 128
        return {
            "u": _w((lambda *s: torch.randn(*s, dtype=torch.bfloat16) * 0.05)(Bsz, L, D)),
            "log_A_real": _w((lambda *s: torch.randn(*s, dtype=torch.bfloat16) * 6.4)(D, N) * 0.5),
            "A_imag": _w((lambda *s: torch.randn(*s, dtype=torch.bfloat16) * 0.05)(D, N) * 3.14),
            "C_real": _w((lambda *s: torch.randn(*s, dtype=torch.bfloat16) * 0.05)(D, N) / N ** 0.5),
            "C_imag": _w((lambda *s: torch.randn(*s, dtype=torch.bfloat16) * 0.05)(D, N) / N ** 0.5),
            "log_dt": _w((lambda *s: torch.randn(*s, dtype=torch.bfloat16) * 0.05)(D) * 0.5 - 4.0),
            "D_skip": _w((lambda *s: torch.randn(*s, dtype=torch.bfloat16) * 0.05)(D)),
        }
    _A_in = _A_setup()

    def _B_setup():
        B, S, D, F = 1, 2048, 512, 1792
        return {
            "x": _w((lambda *s: torch.randn(*s, dtype=torch.bfloat16) * 0.05)(B, S, D)),
            "w1": _w((lambda *s: torch.randn(*s, dtype=torch.bfloat16) * 0.4)(D, F) * (2.0 / D) ** 0.5),
            "w3": _w((lambda *s: torch.randn(*s, dtype=torch.bfloat16) * 0.4)(D, F) * (2.0 / D) ** 0.5),
            "w2": _w((lambda *s: torch.randn(*s, dtype=torch.bfloat16) * 0.4)(F, D) * (2.0 / F) ** 0.5),
        }
    _B_in = _B_setup()

    return {
        "A_u": _A_in["u"],
        "A_log_A_real": _A_in["log_A_real"],
        "A_A_imag": _A_in["A_imag"],
        "A_C_real": _A_in["C_real"],
        "A_C_imag": _A_in["C_imag"],
        "A_log_dt": _A_in["log_dt"],
        "A_D_skip": _A_in["D_skip"],
        "B_x": _B_in["x"],
        "B_w1": _B_in["w1"],
        "B_w3": _B_in["w3"],
        "B_w2": _B_in["w2"],
    }

def reference(A_u, A_log_A_real, A_A_imag, A_C_real, A_C_imag, A_log_dt, A_D_skip, B_x, B_w1, B_w3, B_w2):
    def _A_ref(u, log_A_real, A_imag, C_real, C_imag, log_dt, D_skip):
        L = u.shape[1]
        dt = torch.exp(log_dt)
        A = -torch.exp(log_A_real) + 1j * A_imag
        C = (C_real + 1j * C_imag) * dt[:, None]
        pos = (lambda x, dt: x.to(dt))(torch.arange(L), log_dt.dtype)
        P = torch.exp((A * dt[:, None])[:, :, None] * pos[None, None, :])
        K = 2.0 * torch.einsum("dn,dnl->dl", C, P).real
        L2 = 2 * L
        u_t = (lambda x, *d: x.permute(*d))(u, 0, 2, 1)
        Kf = (lambda x, *a, **k: torch.fft.rfft(x.float(), *a, **k))(K, L2)
        Uf = (lambda x, *a, **k: torch.fft.rfft(x.float(), *a, **k))(u_t, L2)
        y = (lambda x, *a, **k: torch.fft.irfft(x, *a, **k).to(torch.bfloat16))(Uf * Kf[None, :, :], L2)[:, :, :L]
        y = (lambda x, *d: x.permute(*d))(y, 0, 2, 1)
        return y + u * D_skip[None, None, :]

    def _B_ref(x, w1, w3, w2):
        gate = torch.einsum("bsd,df->bsf", x, w1)
        up = torch.einsum("bsd,df->bsf", x, w3)
        h = _silu(gate) * up
        out = torch.einsum("bsf,fd->bsd", h, w2)
        return out

    x = A_u
    h = x + _A_ref(_layernorm(x, axis=-1), A_log_A_real, A_A_imag, A_C_real, A_C_imag, A_log_dt, A_D_skip)
    h2 = h + _B_ref(_layernorm(h, axis=-1), B_w1, B_w3, B_w2)
    return h2
```

```python
import re

TRANS = ("v_exp_f32", "v_log_f32", "v_rcp_f32", "v_rsq_f32", "v_sqrt_f32", "v_sin_f32", "v_cos_f32")
REG_RE = re.compile(r"\b([vas])\[(\d+):(\d+)\]|\b([vas])(\d+)\b|\b(vcc|exec|m0)\b")


def regs_of(tok):
    out = []
    for m in REG_RE.finditer(tok):
        if m.group(1):
            out += [(m.group(1), i) for i in range(int(m.group(2)), int(m.group(3)) + 1)]
        elif m.group(4):
            out.append((m.group(4), int(m.group(5))))
        else:
            out.append((m.group(6), 0))
    return out


def split_ops(rest):
    ops, depth, cur = [], 0, ""
    for ch in rest:
        if ch in "[(":
            depth += 1
        if ch in "])":
            depth -= 1
        if ch == "," and depth == 0:
            ops.append(cur.strip()); cur = ""
        else:
            cur += ch
    if cur.strip():
        ops.append(cur.strip())
    return ops


class Ins:
    def __init__(self, line):
        self.line = line
        code = line.split(";")[0].strip()
        self.is_ins = bool(code) and not code.endswith(":") and not code.startswith(".")
        self.is_label = code.endswith(":")
        if not self.is_ins:
            return
        parts = code.split(None, 1)
        op = parts[0]
        self.op = op
        rest = parts[1] if len(parts) > 1 else ""
        ops = split_ops(rest)
        self.mods = rest
        base = re.sub(r"_(e32|e64|dpp|sdwa)$", "", op)
        self.base = base
        R = [regs_of(o.split(" ")[0] if not o.startswith("abs(") else o) for o in ops]
        self.mfma = op.startswith("v_mfma")
        self.valu = op.startswith("v_") and not self.mfma
        self.trans = base in TRANS
        self.ds = op.startswith("ds_")
        self.vmem = op.startswith("buffer_") or op.startswith("global_")
        self.salu = op.startswith("s_")
        self.dpp = op.endswith("_dpp") or "quad_perm" in rest or "row_" in rest or "wave_sh" in rest
        self.perml = "permlane" in op
        self.rdlane = base in ("v_readfirstlane_b32", "v_readlane_b32")
        self.dst, self.src = [], []
        self.srcC = []
        self.states = 1
        self.store_data = []
        flat = lambda L: [r for x in L for r in x]
        if self.mfma:
            self.dst = R[0]; self.src = R[1] + R[2]; self.srcC = R[3] if len(R) > 3 else []
            self.passes = 8 if "32x32x16" in op else 4
            assert "32x32x16" in op or "16x16x32" in op, op
        elif self.valu:
            if self.perml:
                self.dst = R[0] + R[1]; self.src = R[0] + R[1]
            else:
                self.dst = R[0]; self.src = flat(R[1:])
                if base in ("v_fmac_f32", "v_dot2c_f32_bf16", "v_pk_fmac_f16") or self.dpp:
                    self.src += R[0]
                assert "_co_" not in op, op
        elif self.ds:
            if op.startswith("ds_read") or op.startswith("ds_bpermute") or op.startswith("ds_swizzle"):
                self.dst = R[0]; self.src = flat(R[1:])
                if "d16" in op:
                    self.src += R[0]
            else:
                self.src = flat(R)
        elif self.vmem:
            islds = re.search(r"\blds\b", rest) is not None
            if op in ("buffer_inv", "buffer_wbl2"):
                pass
            elif "load" in op and not islds:
                self.dst = R[0]; self.src = flat(R[1:])
            elif "atomic" in op and "sc0" in rest and op.startswith("buffer"):
                self.dst = R[0]; self.src = flat(R)
            else:
                self.src = flat(R)
                if islds:
                    self.src.append(("m0", 0))
                if "store" in op and ("x4" in op or "x3" in op):
                    self.store_data = R[0] if op.startswith("buffer") else R[1]
            self.islds = islds
        elif self.salu:
            if op == "s_nop":
                self.states = int(ops[0], 0) + 1
            elif op.startswith("s_cmp") or op.startswith("s_cbranch") or op in (
                    "s_waitcnt", "s_barrier", "s_branch", "s_setprio", "s_endpgm", "s_sleep", "s_bitcmp1_b32", "s_bitcmp0_b32"):
                self.src = flat(R)
            else:
                self.dst = R[0]; self.src = flat(R[1:])
                if "saveexec" in op:
                    self.dst = self.dst + [("exec", 0)]
        else:
            raise ValueError("unknown op " + line)


def need(p, c):
    n = 0
    pd = set(p.dst)
    isv = lambda r: r[0] in "va" and r[0] not in ("vcc",)
    if p.valu:
        vd = {r for r in pd if r[0] in ("v", "a")}
        sd = {r for r in pd if r[0] in ("s", "vcc")}
        if c.mfma and vd & set(c.src + c.srcC):
            n = max(n, 2)
        if c.valu:
            cs = set(c.src)
            if p.trans and not c.trans and vd & cs:
                n = max(n, 1)
            if p.trans and c.trans and vd & cs:
                n = max(n, 1)
            if (c.dpp or c.perml) and vd & cs:
                n = max(n, 2)
            if c.rdlane and vd & cs:
                n = max(n, 1)
            if sd & cs:
                n = max(n, 4 if c.rdlane else 2)
            if "sdwa" in p.op and vd & (cs | set(c.dst)):
                n = max(n, 1)
        if c.vmem and sd & set(c.src):
            n = max(n, 5)
        if c.salu and sd & set(c.src):
            n = max(n, 1)
    if p.mfma:
        big = 12 if p.passes == 8 else 8
        if c.mfma:
            if pd & set(c.src):
                n = max(n, big)
            if pd & set(c.srcC):
                if not (c.srcC == p.dst and c.passes == p.passes):
                    n = max(n, big - 2)
            elif pd & set(c.dst):
                n = max(n, big)
        elif c.valu or c.ds or c.vmem:
            if pd & (set(c.src) | set(c.dst)):
                n = max(n, big)
        if c.valu and set(p.srcC) & set(c.dst):
            n = max(n, 7 if p.passes == 8 else 3)
    if p.salu and ("m0", 0) in pd and c.vmem and ("m0", 0) in c.src:
        n = max(n, 1)
    if p.vmem and p.store_data and set(p.store_data) & set(c.dst):
        n = max(n, 2 if c.valu else 1)
    return n


def fix_hazards(lines, verbose=False):
    out = []
    hist = []
    loops = {}
    for line in lines:
        for sub in line.split("\n"):
            m = re.match(r"\s*; @loop_begin (\w+)", sub)
            if m:
                loops[m.group(1)] = len(out)
                out.append(sub); continue
            m = re.match(r"\s*; @loop_end (\w+)", sub)
            if m:
                h2 = list(hist)
                cnt = 0
                for l2 in out[loops[m.group(1)]:]:
                    i2 = Ins(l2)
                    if not i2.is_ins:
                        continue
                    dist = 0
                    for p in reversed(h2[-24:]):
                        if need(p, i2) > dist:
                            raise ValueError(f"back-edge hazard: {p.line} -> {i2.line}")
                        dist += p.states
                    h2.append(i2)
                    cnt += 1
                    if cnt > 24:
                        break
                out.append(sub); continue
            if re.match(r"\s*; @reset", sub):
                hist = []
                out.append(sub); continue
            ins = Ins(sub)
            if not ins.is_ins:
                out.append(sub); continue
            dist = 0
            pad = 0
            for p in reversed(hist[-24:]):
                r = need(p, ins)
                if r > dist:
                    pad = max(pad, r - dist)
                dist += p.states
            if pad:
                nop = f"    s_nop {pad - 1}"
                out.append(nop); hist.append(Ins(nop))
            out.append(sub); hist.append(ins)
    return out


class Asm:
    def __init__(self):
        self.lines = []

    def __call__(self, s):
        for l in s.strip("\n").split("\n"):
            l = l.strip()
            if not l:
                continue
            if l.endswith(":") or l.startswith(".") or l.startswith(";"):
                self.lines.append(l)
            else:
                self.lines.append("    " + l)

    def srd(self, d, lo, hi, nbytes):
        self(f"s_mov_b32 s{d}, {lo}\ns_mov_b32 s{d+1}, {hi}\ns_mov_b32 s{d+2}, {nbytes}\ns_mov_b32 s{d+3}, 0x20000")

    def srd_off(self, d, base, off, nbytes):
        self(f"s_add_u32 s{d}, s{base}, {off}\ns_addc_u32 s{d+1}, s{base+1}, 0\n"
             f"s_mov_b32 s{d+2}, {nbytes}\ns_mov_b32 s{d+3}, 0x20000")


def vr(a, n=1):
    return f"v{a}" if n == 1 else f"v[{a}:{a+n-1}]"


def ar(a, n=1):
    return f"a{a}" if n == 1 else f"a[{a}:{a+n-1}]"


def sr(a, n=1):
    return f"s{a}" if n == 1 else f"s[{a}:{a+n-1}]"


def kernel_desc(name, vgpr, sgpr, accum=None):
    if accum is None:
        accum = (vgpr + 3) // 4 * 4
    return f""".p2align 6
.amdhsa_kernel {name}
  .amdhsa_next_free_vgpr {vgpr}
  .amdhsa_next_free_sgpr {sgpr}
  .amdhsa_accum_offset {accum}
  .amdhsa_group_segment_fixed_size 0
  .amdhsa_kernarg_size 112
  .amdhsa_user_sgpr_count 2
  .amdhsa_user_sgpr_kernarg_segment_ptr 1
  .amdhsa_system_sgpr_workgroup_id_x 1
.end_amdhsa_kernel"""
```

```python
from asmlib import *
from layout import *

LOG2E = "0x3fb8aa3b"
INV2PI = "0x3e22f983"


def cmul(A, d, a, b):
    return [f"v_pk_mul_f32 {vr(d,2)}, {vr(a,2)}, {vr(b,2)} op_sel:[0,0] op_sel_hi:[0,1]",
            f"v_pk_fma_f32 {vr(d,2)}, {vr(a,2)}, {vr(b,2)}, {vr(d,2)} op_sel:[1,1,0] op_sel_hi:[1,0,1] neg_lo:[0,1,0]"]


def interleave(A, chains):
    chains = [list(c) for c in chains if c]
    while chains:
        for c in chains:
            A(c.pop(0))
        chains = [c for c in chains if c]


def kgen(A):
    A("""
s_load_dwordx8 s[4:11], s[0:1], 8
s_load_dwordx2 s[12:13], s[0:1], 40
s_load_dwordx2 s[14:15], s[0:1], 104
v_lshrrev_b32 v1, 6, v0
v_and_b32 v2, 63, v0
v_readfirstlane_b32 s3, v1
s_lshl_b32 s16, s2, 9
v_lshlrev_b32 v3, 1, v0
s_lshr_b32 s17, s3, 1
s_lshl_b32 s18, s2, 1
s_add_u32 s17, s17, s18
s_lshl_b32 s18, s17, 1
v_mov_b32 v4, 0
s_waitcnt lgkmcnt(0)
""")
    A.srd(20, "s4", "s5", 131072)
    A.srd(24, "s6", "s7", 131072)
    A.srd(28, "s8", "s9", 131072)
    A.srd(32, "s10", "s11", 131072)
    A.srd(36, "s12", "s13", 1024)
    A("""
buffer_load_ushort v10, v4, s[36:39], s18 offen
buffer_load_ushort v11, v3, s[20:23], s16 offen
buffer_load_ushort v12, v3, s[24:27], s16 offen
buffer_load_ushort v13, v3, s[28:31], s16 offen
buffer_load_ushort v14, v3, s[32:35], s16 offen
""")
    A(f"s_lshl_b32 s19, s17, 12\ns_add_u32 s19, s19, {WS_KR}")
    A.srd_off(40, 14, "s19", 4096)
    A("""
s_lshl_b32 s44, s3, 14
v_lshlrev_b32 v5, 5, v2
v_lshlrev_b32 v6, 2, v2
v_and_b32 v6, 16, v6
v_add3_u32 v5, v5, v6, s44
v_xor_b32 v6, 16, v5
""")
    A("""
v_lshrrev_b32 v7, 2, v2
v_lshlrev_b32 v7, 5, v7
v_lshlrev_b32 v8, 3, v2
v_and_b32 v8, 24, v8
v_and_b32 v9, 16, v2
v_xor_b32 v8, v8, v9
v_add3_u32 v7, v7, v8, s44
""")
    A("""
s_lshr_b32 s45, s3, 1
s_mul_i32 s45, s45, 6144
s_add_u32 s45, s45, 65536
s_and_b32 s47, s3, 1
s_lshl_b32 s46, s47, 2
s_add_u32 s46, s46, s45
v_and_b32 v8, 15, v2
v_lshrrev_b32 v9, 4, v2
""")
    A("""
v_and_b32 v20, 1, v9
v_lshrrev_b32 v21, 1, v9
v_lshlrev_b32 v16, 3, v8
v_lshl_add_u32 v16, v20, 2, v16
v_lshl_add_u32 v16, v21, 7, v16
v_lshl_add_u32 v16, v16, 3, s46
""")
    A("""
v_cmp_gt_u32 vcc, 2, v9
v_lshlrev_b32 v17, 1, v8
v_lshlrev_b32 v18, 2, v8
v_cndmask_b32 v17, v17, v18, vcc
v_lshl_add_u32 v17, v9, 6, v17
v_add_u32 v17, 256, v17
v_lshl_add_u32 v17, v17, 3, s46
v_mov_b32 v18, 256
v_cndmask_b32 v18, v18, 16, vcc
v_add_u32 v18, v17, v18
""")
    A("""
v_lshl_add_u32 v19, v9, 6, v8
v_add_u32 v19, 512, v19
v_lshl_add_u32 v19, v19, 3, s46
""")
    A("""
s_lshl_b32 s48, s47, 9
s_sub_u32 s48, 2047, s48
v_lshlrev_b32 v20, 3, v2
v_sub_u32 v20, s48, v20
s_mov_b32 s49, 0xffffbd80
""")
    for u in range(2):
        for i in range(0, 8, 2):
            d = 24 + 8 * u + i
            A(f"v_subrev_u32 v21, {1024*u+i}, v20")
            A(f"v_subrev_u32 v22, {1024*u+i+1}, v20")
            A(f"v_cvt_f32_u32 v{d}, v21")
            A(f"v_cvt_f32_u32 v{d+1}, v22")
            A(f"v_cvt_pk_bf16_f32 v23, v{d}, v{d+1}")
            A(f"v_and_b32 v{d}, 0xffff, v23")
            A(f"v_lshrrev_b32 v{d+1}, 16, v23")
            A(f"v_add_u32 v{d}, s49, v{d}")
            A(f"v_add_u32 v{d+1}, s49, v{d+1}")
            if u == 1:
                A(f"v_min_u32 v21, 128, v21")
                A(f"v_min_u32 v22, 128, v22")
                A(f"v_max_i32 v{d}, v{d}, v21")
                A(f"v_max_i32 v{d+1}, v{d+1}, v22")
            A(f"v_lshl_add_u32 v{d}, v{d}, 3, s45")
            A(f"v_lshl_add_u32 v{d+1}, v{d+1}, 3, s45")
    A("""
s_lshl_b32 s48, s47, 10
v_lshl_add_u32 v15, v2, 4, s48
""")
    A(f"""
s_mov_b32 s50, {LOG2E}
s_mov_b32 s51, {INV2PI}
s_waitcnt vmcnt(3)
v_lshlrev_b32 v10, 16, v10
v_lshlrev_b32 v11, 16, v11
v_mul_f32 v10, s50, v10
v_mul_f32 v11, s50, v11
v_exp_f32 v10, v10
v_exp_f32 v11, v11
s_waitcnt vmcnt(0)
v_lshlrev_b32 v12, 16, v12
v_cvt_pk_bf16_f32 v20, v10, v11
v_lshlrev_b32 v13, 16, v13
v_lshlrev_b32 v14, 16, v14
v_lshlrev_b32 v10, 16, v20
v_and_b32 v11, 0xffff0000, v20
v_mul_f32 v11, v11, v10
v_mul_f32 v12, v12, v10
v_mul_f32_e64 v11, -v11, s50
v_mul_f32 v12, s51, v12
v_add_f32 v10, v10, v10
""")
    X = 40
    P = 72
    Q = 88
    R1 = 104
    R2 = 136
    E8 = 154
    PK = 156
    def direct(d, p, conj=False, t=188):
        return [f"v_mul_f32 v{t}, {p}, v11" if p != "1.0" else f"v_mov_b32 v{t}, v11",
                f"v_mul_f32 v{t+1}, {p}, v12" if p != "1.0" else f"v_mov_b32 v{t+1}, v12",
                f"v_exp_f32 v{t}, v{t}",
                f"v_fract_f32 v{t+1}, v{t+1}",
                f"v_cos_f32 v{d}, v{t+1}",
                f"v_sin_f32 v{d+1}, v{t+1}",
                f"v_mul_f32 v{d}, v{d}, v{t}",
                f"v_mul_f32_e64 v{d+1}, v{d+1}, {'-' if conj else ''}v{t}"]
    interleave(A, [direct(E8, "0x41000000", True, 188), direct(P + 2, "1.0", False, 190), direct(Q, "0x43000000", False, 192)])
    A(f"""
v_mul_f32 v{X}, v13, v10
v_mul_f32_e64 v{X+1}, -v14, v10
v_mov_b32 v{P}, 1.0
v_mov_b32 v{P+1}, 0
""")
    G = {1: Q, 2: R1, 3: R1 + 8, 4: R1 + 16, 5: R1 + 20, 6: R1 + 24, 7: R1 + 28}
    for j in range(8, 17):
        G[j] = R2 + 2 * (j - 8)
    chX, chP, chG = [], [], []
    for b in range(1, 16):
        chX += cmul(A, X + 2 * b, X + 2 * b - 2, E8)
    for k in range(2, 8):
        chP += cmul(A, P + 2 * k, P + 2 * k - 2, P + 2)
    for k in range(1, 8):
        chP += cmul(A, Q + 2 * k, P + 2 * k, Q)
    for j in range(2, 17):
        chG += cmul(A, G[j], G[j - 1], Q)
    interleave(A, [chX, chP, chG])

    def pack_store(base, tile, npos=16, pk=PK):
        for c in range(2):
            for i in range(8):
                if 2 * i + 1 < npos:
                    A(f"v_cvt_pk_bf16_f32 v{pk+8*c+i}, v{base+4*i+c}, v{base+4*i+2+c}")
                elif 2 * i < npos:
                    A(f"v_cvt_pk_bf16_f32 v{pk+8*c+i}, v{base+4*i+c}, 0")
                else:
                    A(f"v_mov_b32 v{pk+8*c+i}, 0")
            A(f"ds_write_b128 v5, {vr(pk+8*c,4)} offset:{tile*4096+c*2048}")
            A(f"ds_write_b128 v6, {vr(pk+8*c+4,4)} offset:{tile*4096+c*2048}")
    pack_store(X, 0, pk=PK)
    pack_store(P, 1, pk=PK + 16)
    c1, c2 = [], []
    for i, k in enumerate((2, 4, 6)):
        c1 += cmul(A, R1 + 2 * (1 + i), R1, P + 2 * k)
        c2 += cmul(A, R1 + 8 + 2 * (1 + i), R1 + 8, P + 2 * k)
    c1 += cmul(A, R1 + 18, R1 + 16, P + 8) + cmul(A, R1 + 22, R1 + 20, P + 8)
    c2 += cmul(A, R1 + 26, R1 + 24, P + 8) + cmul(A, R1 + 30, R1 + 28, P + 8)
    interleave(A, [c1, c2])
    pack_store(R2, 3, npos=9, pk=X)
    pack_store(R1, 2, pk=X + 16)
    F = 72
    A("s_waitcnt lgkmcnt(0)")
    for t in (0, 1, 3, 2):
        for s in range(4):
            for h in range(2):
                A(f"ds_read_b64_tr_b16 {vr(F+(t*4+s)*4+2*h,2)}, v7 offset:{t*4096+s*1024+h*512}")
        if t == 1:
            A("s_waitcnt lgkmcnt(0)")
    D = 140
    first = True
    for n, t in enumerate((1, 3, 2)):
        if n == 1:
            A("s_waitcnt lgkmcnt(8)")
        if n == 2:
            A("s_waitcnt lgkmcnt(0)")
        for s in range(4):
            c = "0" if s == 0 else vr(D + 4 * t, 4)
            A(f"v_mfma_f32_16x16x32_bf16 {vr(D+4*t,4)}, {vr(F+(t*4+s)*4,4)}, {vr(F+s*4,4)}, {c}")
    for q in range(4):
        A(f"ds_write_b32 v16, v{D+4+q} offset:{8*q}")
    for q in range(4):
        A(f"ds_write_b32 v19, v{D+12+q} offset:{128*q}")
    for q in range(4):
        A(f"ds_write_b32 v{17+q//2}, v{D+8+q} offset:{8*(q&1)}")
    A("s_waitcnt lgkmcnt(0)\ns_barrier")
    Gt = 40
    for i in range(16):
        A(f"ds_read_b64 {vr(Gt+2*i,2)}, v{24+i}")
        if i == 14:
            A("s_waitcnt lgkmcnt(7)")
    for u in range(2):
        if u == 1:
            A("s_waitcnt lgkmcnt(0)")
        for i in range(8):
            r = Gt + 16 * u + 2 * i
            A(f"v_add_f32 v{r}, v{r}, v{r+1}")
        for i in range(4):
            r = Gt + 16 * u + 4 * i
            A(f"v_cvt_pk_bf16_f32 v{72+4*u+i}, v{r}, v{r+2}")
        A(f"buffer_store_dwordx4 {vr(72+4*u,4)}, v15, s[40:43], 0 offen offset:{2048*u}")
    A("s_endpgm")


def red32(A, v, t):
    A(f"""
v_add_f32_dpp v{v}, v{v}, v{v} quad_perm:[1,0,3,2] row_mask:0xf bank_mask:0xf
v_add_f32_dpp v{v}, v{v}, v{v} quad_perm:[2,3,0,1] row_mask:0xf bank_mask:0xf
v_add_f32_dpp v{v}, v{v}, v{v} row_half_mirror row_mask:0xf bank_mask:0xf
v_add_f32_dpp v{v}, v{v}, v{v} row_mirror row_mask:0xf bank_mask:0xf
v_mov_b32 v{t}, v{v}
v_permlane16_swap_b32 v{v}, v{t}
v_add_f32 v{v}, v{v}, v{t}
""")


def ln1(A):
    A("""
s_load_dwordx2 s[4:5], s[0:1], 0
s_load_dwordx2 s[14:15], s[0:1], 104
s_and_b32 s16, s2, 7
s_lshl_b32 s16, s16, 5
s_lshr_b32 s17, s2, 3
s_add_u32 s16, s16, s17
s_lshl_b32 s17, s16, 13
v_lshrrev_b32 v1, 5, v0
v_and_b32 v2, 31, v0
v_lshlrev_b32 v1, 10, v1
v_lshl_add_u32 v1, v2, 4, v1
v_lshlrev_b32 v3, 2, v0
s_waitcnt lgkmcnt(0)
""")
    A.srd(20, "s4", "s5", 2097152)
    A("""
buffer_load_dwordx4 v[8:11], v1, s[20:23], s17 offen
buffer_load_dwordx4 v[12:15], v1, s[20:23], s17 offen offset:512
s_add_u32 s18, s17, 4096
""")
    for t in range(8):
        A(f"buffer_load_dword v{16+t}, v3, s[20:23], {'s17' if t < 4 else 's18'} offen offset:{(t%4)*1024}")
    A.srd(24, "s14", "s15", 0x400000)
    A("""
s_lshl_b32 s19, s16, 4
v_lshlrev_b32 v4, 13, v0
v_lshrrev_b32 v5, 5, v0
v_lshlrev_b32 v5, 3, v5
s_mov_b32 s28, 0xffff0000
s_mov_b32 s29, 0x3b000000
s_mov_b32 s30, 0x05040100
s_mov_b32 s31, 0x07060302
s_waitcnt vmcnt(8)
""")
    for i in range(8):
        A(f"v_lshlrev_b32 v{24+2*i}, 16, v{8+i}")
        A(f"v_and_b32 v{25+2*i}, s28, v{8+i}")
    A(f"v_pk_add_f32 v[40:41], v[24:25], v[26:27]")
    A(f"v_pk_add_f32 v[42:43], v[28:29], v[30:31]")
    A(f"v_pk_add_f32 v[44:45], v[32:33], v[34:35]")
    A(f"v_pk_add_f32 v[46:47], v[36:37], v[38:39]")
    A(f"v_pk_add_f32 v[40:41], v[40:41], v[42:43]")
    A(f"v_pk_add_f32 v[44:45], v[44:45], v[46:47]")
    A(f"v_pk_add_f32 v[40:41], v[40:41], v[44:45]")
    A(f"v_add_f32 v40, v40, v41")
    red32(A, 40, 41)
    A("v_mul_f32 v40, s29, v40")
    for i in range(8):
        A(f"v_pk_add_f32 {vr(24+2*i,2)}, {vr(24+2*i,2)}, v[40:41] op_sel_hi:[1,0] neg_lo:[0,1] neg_hi:[0,1]")
    A("v_pk_mul_f32 v[42:43], v[24:25], v[24:25]")
    A("v_pk_mul_f32 v[44:45], v[26:27], v[26:27]")
    for i in range(2, 8):
        d = 42 + 2 * (i & 1)
        A(f"v_pk_fma_f32 {vr(d,2)}, {vr(24+2*i,2)}, {vr(24+2*i,2)}, {vr(d,2)}")
    A("v_pk_add_f32 v[42:43], v[42:43], v[44:45]")
    A("v_add_f32 v42, v42, v43")
    red32(A, 42, 43)
    A("""
v_mul_f32 v42, s29, v42
v_cvt_pk_bf16_f32 v44, v40, v42
v_lshlrev_b32 v40, 16, v44
v_and_b32 v42, s28, v44
v_add_f32 v42, 0x3727c5ac, v42
v_cvt_pk_bf16_f32 v42, v42, v42
v_lshlrev_b32 v42, 16, v42
v_sqrt_f32 v42, v42
v_cvt_pk_bf16_f32 v42, v42, v42
v_lshlrev_b32 v42, 16, v42
v_rcp_f32 v41, v42
v_mov_b32 v6, 0
ds_write_b64 v5, v[40:41]
s_waitcnt lgkmcnt(0)
s_barrier
ds_read_b128 v[48:51], v6
ds_read_b128 v[52:55], v6 offset:16
ds_read_b128 v[56:59], v6 offset:32
ds_read_b128 v[60:63], v6 offset:48
s_waitcnt vmcnt(0)
""")
    for i in range(4):
        A(f"v_perm_b32 v{64+i}, v{17+2*i}, v{16+2*i}, s30")
        A(f"v_perm_b32 v{68+i}, v{17+2*i}, v{16+2*i}, s31")
    A(f"s_add_u32 s18, s19, {WS_XT}")
    A(f"s_add_u32 s17, s18, 4096")
    A("buffer_store_dwordx4 v[64:67], v4, s[24:27], s18 offen")
    A("buffer_store_dwordx4 v[68:71], v4, s[24:27], s17 offen")
    for t in range(8):
        A(f"v_lshlrev_b32 v{24+2*t}, 16, v{16+t}")
        A(f"v_and_b32 v{25+2*t}, s28, v{16+t}")
    A("s_waitcnt lgkmcnt(0)")
    for t in range(8):
        A(f"v_pk_add_f32 {vr(24+2*t,2)}, {vr(24+2*t,2)}, {vr(48+2*t,2)} op_sel_hi:[1,0] neg_lo:[0,1] neg_hi:[0,1]")
    for t in range(8):
        A(f"v_cvt_pk_bf16_f32 v{16+t}, v{24+2*t}, v{25+2*t}")
    for t in range(8):
        A(f"v_lshlrev_b32 v{24+2*t}, 16, v{16+t}")
        A(f"v_and_b32 v{25+2*t}, s28, v{16+t}")
    for t in range(8):
        A(f"v_pk_mul_f32 {vr(24+2*t,2)}, {vr(24+2*t,2)}, {vr(48+2*t,2)} op_sel:[0,1] op_sel_hi:[1,1]")
    for i in range(4):
        A(f"v_cvt_pk_bf16_f32 v{72+i}, v{24+4*i}, v{26+4*i}")
        A(f"v_cvt_pk_bf16_f32 v{76+i}, v{25+4*i}, v{27+4*i}")
    A(f"s_add_u32 s18, s19, {WS_UT}")
    A(f"s_add_u32 s17, s18, 4096")
    A("buffer_store_dwordx4 v[72:75], v4, s[24:27], s18 offen")
    A("buffer_store_dwordx4 v[76:79], v4, s[24:27], s17 offen")
    A("s_endpgm")


def k1(A):
    A("""
.globl k1_kernel
.p2align 8
.type k1_kernel,@function
k1_kernel:
s_cmp_ge_u32 s2, 256
s_cbranch_scc1 K1_ln
""")
    kgen(A)
    A("""
; @reset
K1_ln:
s_cmp_ge_u32 s2, 512
s_cbranch_scc1 K1_done
s_sub_u32 s2, s2, 256
""")
    ln1(A)
    A("K1_done:\ns_endpgm")
    return dict(name="k1_kernel", grid=512, block=256, lds=65536 + 12288, vgpr=196, sgpr=56)
```

```python
from asmlib import *
from layout import *

KCOPY = 4160
CH_K = 4 * KCOPY
CH_U = 4608
CH = CH_K + CH_U
XCH = 2 * CH


def conv(A):
    A("""
s_load_dwordx2 s[4:5], s[0:1], 48
s_load_dwordx2 s[14:15], s[0:1], 104
v_lshrrev_b32 v1, 6, v0
v_and_b32 v2, 63, v0
v_readfirstlane_b32 s3, v1
s_lshr_b32 s16, s3, 1
s_and_b32 s17, s3, 1
s_lshl_b32 s18, s2, 1
s_add_u32 s18, s18, s16
s_lshl_b32 s19, s18, 12
v_lshlrev_b32 v3, 4, v2
""")
    A(f"""
s_mul_i32 s44, s16, {CH}
s_lshl_b32 s45, s17, 11
s_add_u32 s46, s44, s45
s_add_u32 s46, s46, {CH_K + 512}
s_lshl_b32 s47, s17, 10
s_add_u32 s48, s19, {WS_KR}
s_add_u32 s49, s19, s45
v_add_u32 v4, s47, v3
s_waitcnt lgkmcnt(0)
""")
    A.srd_off(20, 14, "s48", 4096)
    A.srd(24, "s14", "s15", 0x800000)
    A.srd(28, "s4", "s5", 1024)
    for u in range(2):
        b = 8 + 12 * u
        A(f"buffer_load_dwordx4 {vr(b,4)}, v4, s[20:23], 0 offen offset:{2048*u}")
        A(f"buffer_load_dwordx4 {vr(b+4,4)}, v4, s[20:23], 0 offen offset:{2048*u+4}")
        A(f"buffer_load_dword v{b+8}, v4, s[20:23], 0 offen offset:{2048*u+20}")
    A(f"""
s_mov_b32 m0, s46
s_add_u32 s49, s49, {WS_UT}
buffer_load_dwordx4 v3, s[24:27], s49 offen lds
buffer_load_dwordx4 v3, s[24:27], s49 offen offset:1024 lds
""")
    A(f"""
v_and_b32 v5, 15, v2
v_lshrrev_b32 v6, 4, v2
v_lshlrev_b32 v7, 5, v5
v_lshl_add_u32 v7, v6, 3, v7
s_add_u32 s50, s49, {WS_XT - WS_UT}
s_add_u32 s51, s49, {WS_HT - WS_UT}
s_lshl_b32 s52, s18, 1
v_mov_b32 v32, 0
""")
    for t in range(4):
        A(f"buffer_load_dwordx2 {vr(200+2*t,2)}, v7, s[24:27], s50 offen offset:{512*t}")
    A("buffer_load_ushort v208, v32, s[28:31], s52 offen")
    A(f"""
v_mov_b32 v33, 0
v_mov_b32 v34, 0
v_mov_b32 v35, 0
v_add_u32 v36, {CH_K}, v3
v_subrev_u32 v37, 32, v2
v_lshrrev_b32 v38, 1, v37
v_and_b32 v37, 1, v37
v_mul_u32_u24 v38, {KCOPY}, v38
v_lshl_add_u32 v38, v37, 4, v38
v_add_u32 v38, 4096, v38
v_cmp_gt_u32 vcc, 32, v2
v_cndmask_b32 v36, v38, v36, vcc
v_add_u32 v36, s44, v36
v_cmp_gt_u32 vcc, 40, v2
s_and_saveexec_b64 s[54:55], vcc
ds_write_b128 v36, v[32:35]
s_mov_b64 exec, s[54:55]
""")
    A(f"""
v_sub_u32 v36, 15, v5
v_and_b32 v37, 3, v36
v_lshrrev_b32 v36, 2, v36
v_mul_u32_u24 v40, {KCOPY}, v37
v_lshl_add_u32 v40, v36, 3, v40
v_lshl_add_u32 v40, v6, 4, v40
s_lshl_b32 s53, s17, 8
s_sub_u32 s53, s44, s53
v_add_u32 v40, s53, v40
v_lshlrev_b32 v41, 5, v5
v_lshl_add_u32 v41, v6, 4, v41
s_add_u32 s53, s53, {CH_K}
v_add_u32 v41, s53, v41
v_add_u32 v42, s44, v4
""")
    for u in range(2):
        b = 8 + 12 * u
        A(f"s_waitcnt vmcnt({10 - 3 * u})")
        o1, o3 = 44 + 8 * u, 48 + 8 * u
        A(f"ds_write_b128 v42, {vr(b,4)} offset:{2048*u}")
        A(f"ds_write_b128 v42, {vr(b+4,4)} offset:{2*KCOPY+2048*u}")
        for i in range(4):
            A(f"v_alignbit_b32 v{o1+i}, v{b+4+i}, v{b+i}, 16")
        A(f"ds_write_b128 v42, {vr(o1,4)} offset:{KCOPY+2048*u}")
        for i in range(4):
            A(f"v_alignbit_b32 v{o3+i}, v{b+5+i}, v{b+4+i}, 16")
        A(f"ds_write_b128 v42, {vr(o3,4)} offset:{3*KCOPY+2048*u}")
    A("s_waitcnt vmcnt(5) lgkmcnt(0)\ns_barrier")
    ACC = 8
    FA = [64, 128]

    def reads(w, buf):
        L = []
        fa, fb = FA[buf], FA[buf] + 32
        for i in range(8):
            L.append(f"ds_read_b128 {vr(fb+4*i,4)}, v41 offset:{480+512*i-64*w}")
            L.append(f"ds_read_b64 {vr(fa+4*i,2)}, v40 offset:{4032-64*w-512*i}")
            L.append(f"ds_read_b64 {vr(fa+4*i+2,2)}, v40 offset:{4032-64*w-512*i+8}")
        return L
    order = []
    for m in range(8):
        for i in range(m + 1):
            for d in range(m + 1):
                if max(i, d) == m and i + d <= 7:
                    order.append((m, i, d))
    started = set()
    cur = reads(0, 0)
    for r in cur[:15]:
        A(r)
    pend = cur[15:]
    issued = 15
    for w in range(4):
        buf = w & 1
        fa, fb = FA[buf], FA[buf] + 32
        nxt = reads(w + 1, buf ^ 1) if w < 3 else []
        queue = pend + nxt
        base = 24 * w
        lastm = -1
        for n, (m, i, d) in enumerate(order):
            if m != lastm:
                needn = base + 3 * (m + 1)
                while issued < needn:
                    A(queue.pop(0)); issued += 1
                out = issued - needn
                if w == 0 or m in (0, 4):
                    if w > 0:
                        tgt = base + (15 if m == 0 else 24)
                        out = issued - tgt
                    A(f"s_waitcnt lgkmcnt({min(out, 15)})")
                lastm = m
            t = i + d
            c = vr(ACC + 4 * t, 4) if t in started else "0"
            started.add(t)
            A(f"v_mfma_f32_16x16x32_bf16 {vr(ACC+4*t,4)}, {vr(fa+4*i,4)}, {vr(fb+4*d,4)}, {c}")
            if queue and (w == 0 or n >= 2):
                A(queue.pop(0)); issued += 1
        pend = queue
        assert not pend, len(pend)
    A(f"""
s_lshl_b32 s53, s3, 12
s_add_u32 s53, s53, {XCH}
v_add_u32 v42, s53, v3
s_xor_b32 s53, s3, 1
s_lshl_b32 s53, s53, 12
s_add_u32 s53, s53, {XCH}
v_add_u32 v43, s53, v3
v_add_u32 v44, s46, v7
s_cmp_eq_u32 s17, 0
s_cbranch_scc1 K2_x0
""")
    assert XCH % 8192 == 0 or True
    for t in range(4):
        A(f"ds_write_b128 v42, {vr(ACC+4*t,4)} offset:{1024*t}")
    A("s_nop 1")
    for i in range(16):
        A(f"v_mov_b32 v{ACC+i}, v{ACC+16+i}")
    A("s_branch K2_x1\nK2_x0:\ns_nop 7")
    for t in range(4):
        A(f"ds_write_b128 v42, {vr(ACC+16+4*t,4)} offset:{1024*t}")
    A("K2_x1:")
    for t in range(4):
        A(f"ds_read_b64 {vr(64+2*t,2)}, v44 offset:{512*t}")
    A("s_waitcnt lgkmcnt(0)\ns_barrier")
    for t in range(4):
        A(f"ds_read_b128 {vr(72+4*t,4)}, v43 offset:{1024*t}")
    A("""
s_mov_b32 s28, 0xffff0000
s_waitcnt vmcnt(0)
v_lshlrev_b32 v208, 16, v208
""")
    for i in range(8):
        A(f"v_lshlrev_b32 v{88+2*i}, 16, v{64+i}")
        A(f"v_and_b32 v{89+2*i}, s28, v{64+i}")
    for i in range(8):
        A(f"v_pk_mul_f32 {vr(88+2*i,2)}, {vr(88+2*i,2)}, v[208:209] op_sel_hi:[1,0]")
    for i in range(8):
        A(f"v_cvt_pk_bf16_f32 v{64+i}, v{88+2*i}, v{89+2*i}")
    for i in range(8):
        A(f"v_lshlrev_b32 v{88+2*i}, 16, v{64+i}")
        A(f"v_and_b32 v{89+2*i}, s28, v{64+i}")
        A(f"v_lshlrev_b32 v{104+2*i}, 16, v{200+i}")
        A(f"v_and_b32 v{105+2*i}, s28, v{200+i}")
    A("s_waitcnt lgkmcnt(0)")
    for i in range(8):
        A(f"v_pk_add_f32 {vr(ACC+2*i,2)}, {vr(ACC+2*i,2)}, {vr(72+2*i,2)}")
    def rnd(base):
        for i in range(8):
            A(f"v_cvt_pk_bf16_f32 v{64+i}, v{base+2*i}, v{base+2*i+1}")
        for i in range(8):
            A(f"v_lshlrev_b32 v{base+2*i}, 16, v{64+i}")
            A(f"v_and_b32 v{base+2*i+1}, s28, v{64+i}")
    rnd(ACC)
    for i in range(8):
        A(f"v_pk_add_f32 {vr(ACC+2*i,2)}, {vr(ACC+2*i,2)}, {vr(88+2*i,2)}")
    rnd(ACC)
    for i in range(8):
        A(f"v_pk_add_f32 {vr(ACC+2*i,2)}, {vr(ACC+2*i,2)}, {vr(104+2*i,2)}")
    for i in range(8):
        A(f"v_cvt_pk_bf16_f32 v{64+i}, v{ACC+2*i}, v{ACC+2*i+1}")
    for t in range(4):
        A(f"buffer_store_dwordx2 {vr(64+2*t,2)}, v7, s[24:27], s51 offen offset:{512*t}")
    A("s_endpgm")


def colsum(A):
    A("""
s_load_dwordx4 s[4:7], s[0:1], 64
s_load_dwordx2 s[14:15], s[0:1], 104
s_mul_i32 s16, s2, 2341
s_lshr_b32 s16, s16, 16
s_mul_i32 s17, s16, 28
s_sub_u32 s17, s2, s17
v_lshrrev_b32 v1, 6, v0
v_and_b32 v2, 63, v0
v_mul_u32_u24 v3, 57344, v1
v_lshl_add_u32 v3, v2, 2, v3
s_cmp_ge_u32 s17, 14
s_cselect_b32 s18, 14, 0
s_sub_u32 s18, s17, s18
s_lshl_b32 s18, s18, 8
s_mul_i32 s19, s16, 229376
s_add_u32 s18, s18, s19
s_waitcnt lgkmcnt(0)
s_cmp_ge_u32 s17, 14
s_cselect_b32 s20, s6, s4
s_cselect_b32 s21, s7, s5
s_mov_b32 s22, 1835008
s_mov_b32 s23, 0x20000
""")
    for r in range(16):
        A(f"buffer_load_dword v{8+r}, v3, s[20:23], s18 offen")
        if r < 15:
            A("s_add_u32 s18, s18, 3584")
    A.srd_off(24, 14, WS_CS, 8 * 3584 * 4)
    A("""
s_mov_b32 s28, 0xffff0000
v_lshlrev_b32 v4, 3, v0
v_lshlrev_b32 v5, 3, v2
s_mul_i32 s19, s16, 14336
s_lshl_b32 s18, s17, 9
s_add_u32 s19, s19, s18
""")
    for r in range(16):
        if r % 4 == 0:
            A(f"s_waitcnt vmcnt({12 - r})")
        d = 24 + 2 * (r % 2)
        if r < 2:
            A(f"v_lshlrev_b32 v{d}, 16, v{8+r}\nv_and_b32 v{d+1}, s28, v{8+r}")
        else:
            t = 28 + 2 * (r % 2)
            A(f"v_lshlrev_b32 v{t}, 16, v{8+r}\nv_and_b32 v{t+1}, s28, v{8+r}")
            A(f"v_pk_add_f32 {vr(d,2)}, {vr(d,2)}, {vr(t,2)}")
    A("""
v_pk_add_f32 v[24:25], v[24:25], v[26:27]
ds_write_b64 v4, v[24:25]
s_waitcnt lgkmcnt(0)
s_barrier
v_readfirstlane_b32 s3, v1
s_cmp_lg_u32 s3, 0
s_cbranch_scc1 K2_done
ds_read_b64 v[26:27], v5 offset:512
ds_read_b64 v[28:29], v5 offset:1024
ds_read_b64 v[30:31], v5 offset:1536
s_waitcnt lgkmcnt(0)
v_pk_add_f32 v[24:25], v[24:25], v[26:27]
v_pk_add_f32 v[28:29], v[28:29], v[30:31]
v_pk_add_f32 v[24:25], v[24:25], v[28:29]
buffer_store_dwordx2 v[24:25], v5, s[24:27], s19 offen
""")


def k2(A):
    A("""
.globl k2_kernel
.p2align 8
.type k2_kernel,@function
k2_kernel:
; @reset
s_cmp_ge_u32 s2, 256
s_cbranch_scc1 K2_cs
""")
    conv(A)
    A("""
; @reset
K2_cs:
s_cmp_ge_u32 s2, 480
s_cbranch_scc1 K2_done
s_sub_u32 s2, s2, 256
""")
    colsum(A)
    A("K2_done:\ns_endpgm")
    return dict(name="k2_kernel", grid=480, block=256, lds=XCH + 16384, vgpr=212, sgpr=56)
```

```python
from asmlib import *
from layout import *

SLOT = 22784
NSLOT = 7
W1O = 8192
W3O = 8192 + 7296
CSO = NSLOT * SLOT
STO = CSO + 896
LDS = STO + 2048


def slot_next(A, s):
    A(f"s_add_u32 s{s}, s{s}, {SLOT}\ns_cmp_eq_u32 s{s}, {SLOT*NSLOT}\ns_cselect_b32 s{s}, 0, s{s}")


def loader(A, which):
    def wvoff(d, i, comp):
        A(f"""
v_add_u32 v8, {64*i}, v2
v_mul_u32_u24 v9, 4682, v8
v_lshrrev_b32 v9, 16, v9
v_mul_u32_u24 v10, {3584-14*16}, v9
v_lshl_add_u32 v{d}, v8, 4, v10
""")
        if comp:
            A(f"v_subrev_u32 v{d}, {comp}, v{d}")
    A("s_mul_i32 s33, s17, 224")
    if which == 0:
        A("""
v_lshrrev_b32 v8, 4, v2
v_and_b32 v9, 15, v2
v_lshlrev_b32 v10, 2, v8
v_xor_b32 v9, v9, v10
v_lshlrev_b32 v9, 4, v9
v_lshl_add_u32 v16, v8, 12, v9
""")
        for i in range(1, 4):
            A(f"v_add_u32 v{16+i}, {i*(16384-1024)}, v16")
        for i in range(3):
            wvoff(20 + i, i, 1024 * i)
        A("s_lshl_b32 s32, s16, 8")
    else:
        for n, i in enumerate(range(3, 7)):
            wvoff(16 + n, i, 1024 * n)
        for i in range(7):
            wvoff(20 + i, i, 1024 * (i % 4))
    A("s_mov_b32 s34, 0")

    def issue():
        if which == 0:
            A("s_mov_b32 m0, s34\ns_add_u32 s35, s32, 0x10000")
            for i in range(4):
                A(f"buffer_load_dwordx4 v{16+i}, s[20:23], s32 offen offset:{1024*i} lds")
            A("s_add_u32 m0, s34, 4096\ns_add_u32 s32, s32, 0x20000")
            for i in range(4):
                A(f"buffer_load_dwordx4 v{16+i}, s[20:23], s35 offen offset:{1024*i} lds")
            A(f"s_add_u32 m0, s34, {W1O}")
            for i in range(3):
                A(f"buffer_load_dwordx4 v{20+i}, s[24:27], s33 offen offset:{1024*i} lds")
        else:
            A(f"s_add_u32 m0, s34, {W1O+3072}")
            for i in range(4):
                A(f"buffer_load_dwordx4 v{16+i}, s[24:27], s33 offen offset:{1024*i} lds")
            A(f"s_add_u32 m0, s34, {W3O}")
            for i in range(4):
                A(f"buffer_load_dwordx4 v{20+i}, s[28:31], s33 offen offset:{1024*i} lds")
            A(f"s_add_u32 m0, s34, {W3O+4096}")
            for i in range(3):
                A(f"buffer_load_dwordx4 v{24+i}, s[28:31], s33 offen offset:{1024*i} lds")
        A(f"s_add_u32 s33, s33, {32*3584}")
        slot_next(A, 34)
    L = f"K3_ld{which}"
    A(f"s_mov_b32 s36, 0\n{L}:")
    A(f"s_cmp_lt_u32 s36, 5\ns_cbranch_scc1 {L}_i\ns_waitcnt vmcnt(44)\ns_barrier\n{L}_i:")
    issue()
    A(f"s_add_u32 s36, s36, 1\ns_cmp_lt_u32 s36, 16\ns_cbranch_scc1 {L}\n; @loop_end {L}")
    for n in (44, 33, 22, 11, 0):
        A(f"s_waitcnt vmcnt({n})\ns_barrier")
    A("s_endpgm")


def stats(A):
    A(f"""
s_sub_u32 s32, s3, 6
s_mul_i32 s33, s32, 7168
s_mul_i32 s34, s17, 448
s_add_u32 s33, s33, s34
v_lshlrev_b32 v3, 3, v2
v_min_u32 v3, 440, v3
""")
    A.srd_off(36, 14, WS_CS, 8 * 3584 * 4)
    for r in range(8):
        A(f"buffer_load_dwordx2 {vr(32+2*r,2)}, v3, s[36:39], s33 offen")
        if r < 7:
            A(f"s_add_u32 s33, s33, 14336")
    A(f"""
v_lshrrev_b32 v8, 4, v2
v_and_b32 v9, 15, v2
v_lshlrev_b32 v10, 2, v8
v_xor_b32 v10, v9, v10
v_lshlrev_b32 v10, 4, v10
v_lshl_add_u32 v4, v8, 8, v10
s_lshl_b32 s34, s32, 12
v_add_u32 v4, s34, v4
v_lshlrev_b32 v5, 6, v9
v_lshl_add_u32 v5, v8, 4, v5
s_lshl_b32 s34, s32, 10
s_add_u32 s34, s34, {STO}
v_add_u32 v5, s34, v5
s_mul_i32 s34, s32, 448
s_add_u32 s34, s34, {CSO}
v_add_u32 v3, s34, v3
s_mov_b32 s28, 0xffff0000
""")
    for i in range(16):
        A(f"v_mov_b32 v{64+i}, 0")
    A("s_waitcnt vmcnt(0)")
    for r in range(0, 8, 2):
        A(f"v_pk_add_f32 {vr(32+2*r,2)}, {vr(32+2*r,2)}, {vr(34+2*r,2)}")
    A("""
v_pk_add_f32 v[32:33], v[32:33], v[36:37]
v_pk_add_f32 v[40:41], v[40:41], v[44:45]
v_pk_add_f32 v[32:33], v[32:33], v[40:41]
ds_write_b64 v3, v[32:33]
s_mov_b32 s34, 0
s_mov_b32 s36, 0
K3_st:
v_add_u32 v6, s34, v4
s_barrier
""")
    for n in range(4):
        A(f"ds_read_b128 {vr(16+4*n,4)}, v6 offset:{1024*n}")
    slot_next(A, 34)
    for n in range(4):
        A(f"s_waitcnt lgkmcnt({3-n})")
        for i in range(4):
            A(f"v_lshlrev_b32 v{48+2*i}, 16, v{16+4*n+i}")
            A(f"v_and_b32 v{49+2*i}, s28, v{16+4*n+i}")
        for i in range(4):
            A(f"v_pk_add_f32 {vr(64+2*i,2)}, {vr(64+2*i,2)}, {vr(48+2*i,2)}")
            A(f"v_pk_fma_f32 {vr(72+2*i,2)}, {vr(48+2*i,2)}, {vr(48+2*i,2)}, {vr(72+2*i,2)}")
    A("s_add_u32 s36, s36, 1\ns_cmp_lt_u32 s36, 16\ns_cbranch_scc1 K3_st\n; @loop_end K3_st")
    A("s_barrier")
    for b in (64, 72):
        for e in range(4):
            A(f"v_permlane32_swap_b32 v{b+e}, v{b+e+4}")
    for b in (64, 72):
        for e in range(4):
            A(f"v_add_f32 v{b+e}, v{b+e}, v{b+e+4}")
    for b in (64, 72):
        for e in range(2):
            A(f"v_permlane16_swap_b32 v{b+e}, v{b+e+2}")
    A("""
v_add_f32 v16, v64, v66
v_add_f32 v17, v72, v74
v_add_f32 v18, v65, v67
v_add_f32 v19, v73, v75
ds_write_b128 v5, v[16:19]
s_waitcnt lgkmcnt(0)
s_barrier
s_endpgm
""")


def compute(A):
    X, Y, ACC = 32, 64, 96
    A(f"""
v_lshrrev_b32 v8, 5, v2
v_bfe_u32 v9, v2, 2, 2
v_bfe_u32 v10, v2, 4, 1
v_and_b32 v11, 3, v2
v_lshl_add_u32 v12, v8, 3, v9
v_xor_b32 v13, s3, v9
v_lshlrev_b32 v4, 8, v12
v_lshl_add_u32 v4, v13, 6, v4
v_lshl_add_u32 v4, v10, 5, v4
v_lshl_add_u32 v4, v11, 3, v4
v_mul_u32_u24 v5, 224, v12
v_mul_u32_u24 v13, {W3O-W1O}, v10
v_add3_u32 v5, v5, v13, 0
v_lshl_add_u32 v5, v11, 3, v5
v_add_u32 v5, {W1O}, v5
v_mov_b32 v6, v4
v_mov_b32 v7, v5
""")
    for i in range(112):
        A(f"v_mov_b32 v{ACC+i}, 0")

    def reads(S, ks):
        L = []
        for rd in range(2):
            L.append(f"ds_read_b64_tr_b16 {vr(S+2*rd,2)}, v6 offset:{ks*4096+rd*1024}")
        for j in range(7):
            for rd in range(2):
                L.append(f"ds_read_b64_tr_b16 {vr(S+4+4*j+2*rd,2)}, v7 offset:{ks*3584+rd*896+j*32}")
        return L

    def kstep(S, nxt, extra=()):
        per = [2, 2, 3, 2, 2, 3, 2]
        issued = 0
        extra = list(extra)
        for j in range(7):
            if j == 0:
                A("s_waitcnt lgkmcnt(6)")
            if j == 4:
                A(f"s_waitcnt lgkmcnt({issued})")
            A(f"v_mfma_f32_32x32x16_bf16 {vr(ACC+16*j,16)}, {vr(S+4+4*j,4)}, {vr(S,4)}, {vr(ACC+16*j,16)}")
            for _ in range(per[j]):
                A(nxt.pop(0)); issued += 1
            if extra and j in (0, 1, 3, 4):
                A(extra.pop(0))
        assert not nxt and not extra
    A("s_mov_b32 s34, 0\ns_mov_b32 s36, 0\ns_barrier")
    for r in reads(X, 0):
        A(r)
    A("; @loop_begin K3_c\nK3_c:")
    kstep(X, reads(Y, 1), [f"s_add_u32 s34, s34, {SLOT}", f"s_cmp_eq_u32 s34, {SLOT*NSLOT}", "s_cselect_b32 s34, 0, s34", "s_add_u32 s36, s36, 1"])
    A("v_add_u32 v6, s34, v4\nv_add_u32 v7, s34, v5\ns_barrier")
    kstep(Y, reads(X, 0), ["s_cmp_lt_u32 s36, 16"])
    A("s_cbranch_scc1 K3_c\n; @loop_end K3_c")
    A(f"""
v_and_b32 v8, 31, v2
s_lshl_b32 s34, s3, 8
s_add_u32 s34, s34, {STO}
v_lshl_add_u32 v8, v8, 3, s34
v_lshrrev_b32 v9, 5, v2
v_lshlrev_b32 v9, 4, v9
v_add_u32 v9, {CSO}, v9
v_lshlrev_b32 v10, 4, v2
s_lshl_b32 s34, s16, 2
s_add_u32 s34, s34, s3
s_mul_i32 s34, s34, 112
s_mul_i32 s35, s17, 7
s_add_u32 s34, s34, s35
s_lshl_b32 s34, s34, 10
s_mov_b32 s28, 0xffff0000
s_mov_b32 s29, 0x3b000000
s_waitcnt lgkmcnt(0)
s_barrier
ds_read_b64 v[12:13], v8
ds_read_b64 v[14:15], v8 offset:1024
""")
    A.srd_off(36, 14, WS_HH, 64 * 112 * 1024)

    def csreads(j, S):
        for mat in range(2):
            for hq in range(2):
                A(f"ds_read_b128 {vr(S+8*mat+4*hq,4)}, v9 offset:{mat*448+j*64+hq*32}")
    csreads(0, X)
    A("""
s_waitcnt lgkmcnt(4)
v_pk_add_f32 v[12:13], v[12:13], v[14:15]
v_mul_f32 v12, s29, v12
v_mul_f32 v13, s29, v13
v_fma_f32 v13, -v12, v12, v13
v_max_f32 v13, 0, v13
v_cvt_pk_bf16_f32 v14, v12, v13
v_lshlrev_b32 v12, 16, v14
v_and_b32 v13, s28, v14
v_add_f32 v13, 0x3727c5ac, v13
v_cvt_pk_bf16_f32 v13, v13, v13
v_lshlrev_b32 v13, 16, v13
v_sqrt_f32 v13, v13
v_cvt_pk_bf16_f32 v13, v13, v13
v_lshlrev_b32 v13, 16, v13
v_rcp_f32 v14, v13
v_mul_f32 v15, v13, v13
v_mul_f32 v14, 0xbfb8aa3b, v14
""")
    T = 64
    for j in range(7):
        S = X + 16 * (j & 1)
        if j < 6:
            csreads(j + 1, X + 16 * ((j + 1) & 1))
            A("s_waitcnt lgkmcnt(4)")
        else:
            A("s_waitcnt lgkmcnt(0)")
        a = ACC + 16 * j
        for p in range(8):
            A(f"v_pk_fma_f32 {vr(a+2*p,2)}, {vr(S+2*p,2)}, v[12:13], {vr(a+2*p,2)} op_sel_hi:[1,0,1] neg_lo:[1,0,0] neg_hi:[1,0,0]")
        for p in range(4):
            A(f"v_pk_mul_f32 {vr(T+2*p,2)}, {vr(a+2*p,2)}, v[14:15] op_sel_hi:[1,0]")
        for p in range(8):
            A(f"v_exp_f32 v{T+p}, v{T+p}")
        for p in range(4):
            A(f"v_pk_mul_f32 {vr(a+2*p,2)}, {vr(a+2*p,2)}, {vr(a+8+2*p,2)}")
        for p in range(4):
            A(f"v_pk_fma_f32 {vr(T+2*p,2)}, {vr(T+2*p,2)}, v[14:15], v[14:15] op_sel:[0,1,1] op_sel_hi:[1,1,1]")
        for p in range(8):
            A(f"v_rcp_f32 v{T+p}, v{T+p}")
        for p in range(4):
            A(f"v_pk_mul_f32 {vr(a+2*p,2)}, {vr(a+2*p,2)}, {vr(T+2*p,2)}")
        for p in range(4):
            A(f"v_cvt_pk_bf16_f32 v{a+8+p}, v{a+2*p}, v{a+2*p+1}")
        if j == 4:
            A("s_add_u32 s34, s34, 4096")
        A(f"buffer_store_dwordx4 {vr(a+8,4)}, v10, s[36:39], s34 offen offset:{1024*(j%4)}")
    A("s_endpgm")


def k3(A):
    A(f"""
.globl k3_kernel
.p2align 8
.type k3_kernel,@function
k3_kernel:
; @reset
s_cmp_ge_u32 s2, 256
s_cbranch_scc1 K3_done
s_load_dwordx4 s[4:7], s[0:1], 64
s_load_dwordx2 s[14:15], s[0:1], 104
v_lshrrev_b32 v1, 6, v0
v_and_b32 v2, 63, v0
v_readfirstlane_b32 s3, v1
s_and_b32 s16, s2, 1
s_lshl_b32 s16, s16, 3
s_bfe_u32 s18, s2, 0x30003
s_add_u32 s16, s16, s18
s_bfe_u32 s17, s2, 0x20001
s_lshl_b32 s17, s17, 2
s_lshr_b32 s18, s2, 6
s_add_u32 s17, s17, s18
s_waitcnt lgkmcnt(0)
s_cmp_lt_u32 s3, 4
s_cbranch_scc1 K3_comp
s_cmp_ge_u32 s3, 6
s_cbranch_scc1 K3_stats
""")
    A.srd_off(20, 14, WS_HT, 0x200000)
    A.srd(24, "s4", "s5", 1835008)
    A.srd(28, "s6", "s7", 1835008)
    A("s_cmp_eq_u32 s3, 5\ns_cbranch_scc1 K3_l1")
    loader(A, 0)
    A("; @reset\nK3_l1:")
    loader(A, 1)
    A("; @reset\nK3_stats:")
    stats(A)
    A("; @reset\nK3_comp:")
    compute(A)
    A("K3_done:\ns_endpgm")
    return dict(name="k3_kernel", grid=256, block=512, lds=LDS, vgpr=208, sgpr=48)
```

```python
from asmlib import *
from layout import *

SLOT = 16384
NSLOT = 9
RESO = SLOT * NSLOT
LDS = RESO + 8192
NST = 28
AHEAD = 7


def slot_next(s):
    return [f"s_add_u32 s{s}, s{s}, {SLOT}", f"s_cmp_eq_u32 s{s}, {SLOT*NSLOT}", f"s_cselect_b32 s{s}, 0, s{s}"]


def swz_voff(A, d, stride_shift):
    A(f"""
v_lshrrev_b32 v8, 3, v2
v_and_b32 v9, 7, v2
v_lshrrev_b32 v10, 2, v2
v_and_b32 v10, 4, v10
v_xor_b32 v9, v9, v10
v_lshlrev_b32 v9, 4, v9
v_lshl_add_u32 v{d}, v8, {stride_shift}, v9
""")


def loader(A, which):
    if which == 0:
        A.srd_off(20, 14, WS_HH, 64 * 112 * 1024)
        A(f"v_lshlrev_b32 v16, 4, v2\ns_mul_i32 s32, s16, {2*112*1024}")
    else:
        A.srd(20, "s4", "s5", 1835008)
        swz_voff(A, 16, 10)
        for i in range(1, 4):
            A(f"v_add_u32 v{16+i}, {i*(8192-1024)}, v16")
        A("s_lshl_b32 s32, s17, 7")
    A("s_mov_b32 s34, 0")
    L = f"K4_ld{which}"
    A(f"s_mov_b32 s36, 0\n{L}:")
    A(f"s_cmp_lt_u32 s36, {AHEAD}\ns_cbranch_scc1 {L}_i\ns_waitcnt vmcnt({8*(AHEAD-1)})\ns_barrier\n{L}_i:")
    if which == 0:
        A(f"s_mov_b32 m0, s34\ns_add_u32 s35, s32, {112*1024}")
        for i in range(4):
            A(f"buffer_load_dwordx4 v16, s[20:23], s32 offen offset:{1024*i} lds")
        A("s_add_u32 m0, s34, 4096\ns_add_u32 s32, s32, 4096")
        for i in range(4):
            A(f"buffer_load_dwordx4 v16, s[20:23], s35 offen offset:{1024*i} lds")
    else:
        A(f"s_add_u32 m0, s34, 8192\ns_add_u32 s35, s32, 0x8000")
        for i in range(4):
            A(f"buffer_load_dwordx4 v{16+i}, s[20:23], s32 offen offset:{1024*i} lds")
        A("s_add_u32 m0, s34, 12288\ns_add_u32 s32, s32, 0x10000")
        for i in range(4):
            A(f"buffer_load_dwordx4 v{16+i}, s[20:23], s35 offen offset:{1024*i} lds")
    for l in slot_next(34):
        A(l)
    A(f"s_add_u32 s36, s36, 1\ns_cmp_lt_u32 s36, {NST}\ns_cbranch_scc1 {L}\n; @loop_end {L}")
    for n in range(AHEAD - 1, -1, -1):
        A(f"s_waitcnt vmcnt({8*n})\ns_barrier")
    A("s_endpgm")


def compute(A):
    X, Y, ACC = 32, 64, 96
    A("s_and_b32 s18, s3, 1\ns_lshr_b32 s19, s3, 1")
    A.srd_off(20, 14, WS_HT, 0x200000)
    swz_voff(A, 16, 12)
    A(f"""
v_add_u32 v17, {32768-1024}, v16
s_lshl_b32 s32, s17, 18
s_lshl_b32 s33, s3, 16
s_add_u32 s32, s32, s33
s_lshl_b32 s33, s16, 7
s_add_u32 s32, s32, s33
s_lshl_b32 s33, s3, 11
s_add_u32 m0, s33, {RESO}
s_nop 0
buffer_load_dwordx4 v16, s[20:23], s32 offen lds
buffer_load_dwordx4 v17, s[20:23], s32 offen offset:1024 lds
""")
    A(f"""
v_lshrrev_b32 v8, 5, v2
v_bfe_u32 v9, v2, 2, 2
v_bfe_u32 v10, v2, 4, 1
v_and_b32 v11, 3, v2
v_lshl_add_u32 v12, v8, 2, v9
v_lshlrev_b32 v12, 7, v12
v_lshl_add_u32 v12, v10, 5, v12
v_lshl_add_u32 v12, v11, 3, v12
v_lshrrev_b32 v9, 1, v9
v_xor_b32 v13, s19, v9
v_lshl_add_u32 v5, v13, 6, v12
v_add_u32 v5, 8192, v5
v_xor_b32 v13, s18, v9
v_lshl_add_u32 v14, v13, 6, v12
s_lshl_b32 s33, s19, 12
s_add_u32 s33, s33, {RESO}
v_add_u32 v14, s33, v14
s_lshl_b32 s33, s18, 12
v_lshl_add_u32 v4, v2, 4, s33
v_mov_b32 v6, v4
v_mov_b32 v7, v5
""")
    for i in range(16):
        A(f"v_mov_b32 v{ACC+i}, 0")

    def reads(S):
        L = []
        for j in range(4):
            L.append(f"ds_read_b128 {vr(S+8*j,4)}, v6 offset:{1024*j}")
            for rd in range(2):
                L.append(f"ds_read_b64_tr_b16 {vr(S+8*j+4+2*rd,2)}, v7 offset:{2048*j+1024*rd}")
        return L

    def stage(S, N, extra):
        for l in slot_next(34):
            A(l)
        A("v_add_u32 v6, s34, v4\nv_add_u32 v7, s34, v5")
        for l in extra:
            A(l)
        A("s_barrier")
        nxt = reads(N)
        for j in range(4):
            A(f"s_waitcnt lgkmcnt(9)")
            A(f"v_mfma_f32_32x32x16_bf16 {vr(ACC,16)}, {vr(S+8*j+4,4)}, {vr(S+8*j,4)}, {vr(ACC,16)}")
            for _ in range(3):
                A(nxt.pop(0))
    A("s_mov_b32 s34, 0\ns_mov_b32 s36, 0\ns_barrier")
    for r in reads(X):
        A(r)
    A("; @loop_begin K4_c\nK4_c:")
    stage(X, Y, [])
    stage(Y, X, ["s_add_u32 s36, s36, 1", f"s_cmp_lt_u32 s36, {NST//2}", "s_waitcnt vmcnt(0)"])
    A("s_cbranch_scc1 K4_c\n; @loop_end K4_c")
    A("s_waitcnt lgkmcnt(0)")
    for q in range(4):
        A(f"ds_read_b64_tr_b16 {vr(X+2*q,2)}, v14 offset:{1024*q}")
    A.srd(24, "s6", "s7", 0x200000)
    A("""
v_and_b32 v8, 31, v2
v_lshrrev_b32 v9, 5, v2
v_lshlrev_b32 v8, 10, v8
v_lshl_add_u32 v8, v9, 4, v8
s_lshl_b32 s32, s16, 16
s_lshl_b32 s33, s18, 15
s_add_u32 s32, s32, s33
s_lshl_b32 s33, s17, 7
s_add_u32 s32, s32, s33
s_lshl_b32 s33, s19, 6
s_add_u32 s32, s32, s33
s_mov_b32 s28, 0xffff0000
""")
    for i in range(8):
        A(f"v_cvt_pk_bf16_f32 v{Y+i}, v{ACC+2*i}, v{ACC+2*i+1}")
    for i in range(8):
        A(f"v_lshlrev_b32 v{ACC+2*i}, 16, v{Y+i}\nv_and_b32 v{ACC+2*i+1}, s28, v{Y+i}")
    A("s_waitcnt lgkmcnt(0)")
    for i in range(8):
        A(f"v_lshlrev_b32 v{Y+2*i}, 16, v{X+i}\nv_and_b32 v{Y+2*i+1}, s28, v{X+i}")
    for i in range(8):
        A(f"v_pk_add_f32 {vr(ACC+2*i,2)}, {vr(ACC+2*i,2)}, {vr(Y+2*i,2)}")
    for i in range(8):
        A(f"v_cvt_pk_bf16_f32 v{X+i}, v{ACC+2*i}, v{ACC+2*i+1}")
    for p in range(2):
        A(f"v_permlane32_swap_b32 v{X+4*p}, v{X+4*p+2}")
        A(f"v_permlane32_swap_b32 v{X+4*p+1}, v{X+4*p+3}")
    for p in range(2):
        A(f"buffer_store_dwordx4 {vr(X+4*p,4)}, v8, s[24:27], s32 offen offset:{32*p}")
    A("s_endpgm")


def k4(A):
    A(f"""
.globl k4_kernel
.p2align 8
.type k4_kernel,@function
k4_kernel:
; @reset
s_cmp_ge_u32 s2, 256
s_cbranch_scc1 K4_done
s_load_dwordx4 s[4:7], s[0:1], 80
s_load_dwordx2 s[14:15], s[0:1], 104
v_lshrrev_b32 v1, 6, v0
v_and_b32 v2, 63, v0
v_readfirstlane_b32 s3, v1
s_and_b32 s16, s2, 3
s_lshl_b32 s16, s16, 3
s_bfe_u32 s18, s2, 0x30003
s_add_u32 s16, s16, s18
s_bfe_u32 s17, s2, 0x10002
s_lshl_b32 s17, s17, 2
s_lshr_b32 s18, s2, 6
s_add_u32 s17, s17, s18
s_waitcnt lgkmcnt(0)
s_cmp_lt_u32 s3, 4
s_cbranch_scc1 K4_comp
s_cmp_eq_u32 s3, 5
s_cbranch_scc1 K4_l1
""")
    loader(A, 0)
    A("; @reset\nK4_l1:")
    loader(A, 1)
    A("; @reset\nK4_comp:")
    compute(A)
    A("K4_done:\ns_endpgm")
    return dict(name="k4_kernel", grid=256, block=384, lds=LDS, vgpr=112, sgpr=48)
```

```python
import sys
from asmlib import *
import k1, k2, k3, k4
NAME = "sequential_preLN__ssm_conv_s4d__glu_gated_swiglu__prompt"
ref = open(f"cdna_kernels/{NAME}.s.ref").read().split("\n")
head = [l for l in ref if l.startswith(";") and "@launch" not in l and "Override" not in l and "grid=ceil" not in l]
A = Asm()
ks = [k1.k1(A), k2.k2(A), k3.k3(A), k4.k4(A)]
body = fix_hazards(A.lines)
out = head + [f"; @launch kernel={k['name']} grid=({k['grid']},1,1) block=({k['block']},1,1) lds={k['lds']}" for k in ks]
out += ['.amdgcn_target "amdgcn-amd-amdhsa--gfx950"', ".text"] + body + ['.section .rodata,"a"']
out += [kernel_desc(k['name'], k['vgpr'], k['sgpr']) for k in ks]
path = sys.argv[1] if len(sys.argv) > 1 else f"cdna_kernels/{NAME}.s"
open(path, "w").write("\n".join(out) + "\n")
print("wrote", path, len(body), "lines")
```

```python
import re

TRANS = ("v_exp_f32", "v_log_f32", "v_rcp_f32", "v_rsq_f32", "v_sqrt_f32", "v_sin_f32", "v_cos_f32")
REG_RE = re.compile(r"\b([vas])\[(\d+):(\d+)\]|\b([vas])(\d+)\b|\b(vcc|exec|m0)\b")


def regs_of(tok):
    out = []
    for m in REG_RE.finditer(tok):
        if m.group(1):
            out += [(m.group(1), i) for i in range(int(m.group(2)), int(m.group(3)) + 1)]
        elif m.group(4):
            out.append((m.group(4), int(m.group(5))))
        else:
            out.append((m.group(6), 0))
    return out


def split_ops(rest):
    ops, depth, cur = [], 0, ""
    for ch in rest:
        if ch in "[(":
            depth += 1
        if ch in "])":
            depth -= 1
        if ch == "," and depth == 0:
            ops.append(cur.strip()); cur = ""
        else:
            cur += ch
    if cur.strip():
        ops.append(cur.strip())
    return ops


class Ins:
    def __init__(self, line):
        self.line = line
        code = line.split(";")[0].strip()
        self.is_ins = bool(code) and not code.endswith(":") and not code.startswith(".")
        self.is_label = code.endswith(":")
        if not self.is_ins:
            return
        parts = code.split(None, 1)
        op = parts[0]
        self.op = op
        rest = parts[1] if len(parts) > 1 else ""
        ops = split_ops(rest)
        self.mods = rest
        base = re.sub(r"_(e32|e64|dpp|sdwa)$", "", op)
        self.base = base
        R = [regs_of(o.split(" ")[0] if not o.startswith("abs(") else o) for o in ops]
        self.mfma = op.startswith("v_mfma")
        self.valu = op.startswith("v_") and not self.mfma
        self.trans = base in TRANS
        self.ds = op.startswith("ds_")
        self.vmem = op.startswith("buffer_") or op.startswith("global_")
        self.salu = op.startswith("s_")
        self.dpp = op.endswith("_dpp") or "quad_perm" in rest or "row_" in rest or "wave_sh" in rest
        self.perml = "permlane" in op
        self.rdlane = base in ("v_readfirstlane_b32", "v_readlane_b32")
        self.dst, self.src = [], []
        self.srcC = []
        self.states = 1
        self.store_data = []
        flat = lambda L: [r for x in L for r in x]
        if self.mfma:
            self.dst = R[0]; self.src = R[1] + R[2]; self.srcC = R[3] if len(R) > 3 else []
            self.passes = 8 if "32x32x16" in op else 4
            assert "32x32x16" in op or "16x16x32" in op, op
        elif self.valu:
            if self.perml:
                self.dst = R[0] + R[1]; self.src = R[0] + R[1]
            else:
                self.dst = R[0]; self.src = flat(R[1:])
                if base in ("v_fmac_f32", "v_dot2c_f32_bf16", "v_pk_fmac_f16") or self.dpp:
                    self.src += R[0]
                assert "_co_" not in op, op
        elif self.ds:
            if op.startswith("ds_read") or op.startswith("ds_bpermute") or op.startswith("ds_swizzle"):
                self.dst = R[0]; self.src = flat(R[1:])
                if "d16" in op:
                    self.src += R[0]
            else:
                self.src = flat(R)
        elif self.vmem:
            islds = re.search(r"\blds\b", rest) is not None
            if op in ("buffer_inv", "buffer_wbl2"):
                pass
            elif "load" in op and not islds:
                self.dst = R[0]; self.src = flat(R[1:])
            elif "atomic" in op and "sc0" in rest and op.startswith("buffer"):
                self.dst = R[0]; self.src = flat(R)
            else:
                self.src = flat(R)
                if islds:
                    self.src.append(("m0", 0))
                if "store" in op and ("x4" in op or "x3" in op):
                    self.store_data = R[0] if op.startswith("buffer") else R[1]
            self.islds = islds
        elif self.salu:
            if op == "s_nop":
                self.states = int(ops[0], 0) + 1
            elif op.startswith("s_cmp") or op.startswith("s_cbranch") or op in (
                    "s_waitcnt", "s_barrier", "s_branch", "s_setprio", "s_endpgm", "s_sleep", "s_bitcmp1_b32", "s_bitcmp0_b32"):
                self.src = flat(R)
            else:
                self.dst = R[0]; self.src = flat(R[1:])
                if "saveexec" in op:
                    self.dst = self.dst + [("exec", 0)]
        else:
            raise ValueError("unknown op " + line)


def need(p, c):
    n = 0
    pd = set(p.dst)
    isv = lambda r: r[0] in "va" and r[0] not in ("vcc",)
    if p.valu:
        vd = {r for r in pd if r[0] in ("v", "a")}
        sd = {r for r in pd if r[0] in ("s", "vcc")}
        if c.mfma and vd & set(c.src + c.srcC):
            n = max(n, 2)
        if c.valu:
            cs = set(c.src)
            if p.trans and not c.trans and vd & cs:
                n = max(n, 1)
            if p.trans and c.trans and vd & cs:
                n = max(n, 1)
            if (c.dpp or c.perml) and vd & cs:
                n = max(n, 2)
            if c.rdlane and vd & cs:
                n = max(n, 1)
            if sd & cs:
                n = max(n, 4 if c.rdlane else 2)
            if "sdwa" in p.op and vd & (cs | set(c.dst)):
                n = max(n, 1)
        if c.vmem and sd & set(c.src):
            n = max(n, 5)
        if c.salu and sd & set(c.src):
            n = max(n, 1)
    if p.mfma:
        big = 12 if p.passes == 8 else 8
        if c.mfma:
            if pd & set(c.src):
                n = max(n, big)
            if pd & set(c.srcC):
                if not (c.srcC == p.dst and c.passes == p.passes):
                    n = max(n, big - 2)
            elif pd & set(c.dst):
                n = max(n, big)
        elif c.valu or c.ds or c.vmem:
            if pd & (set(c.src) | set(c.dst)):
                n = max(n, big)
        if c.valu and set(p.srcC) & set(c.dst):
            n = max(n, 7 if p.passes == 8 else 3)
    if p.salu and ("m0", 0) in pd and c.vmem and ("m0", 0) in c.src:
        n = max(n, 1)
    if p.vmem and p.store_data and set(p.store_data) & set(c.dst):
        n = max(n, 2 if c.valu else 1)
    return n


def fix_hazards(lines, verbose=False):
    out = []
    hist = []
    loops = {}
    for line in lines:
        for sub in line.split("\n"):
            m = re.match(r"\s*; @loop_begin (\w+)", sub)
            if m:
                loops[m.group(1)] = len(out)
                out.append(sub); continue
            m = re.match(r"\s*; @loop_end (\w+)", sub)
            if m:
                h2 = list(hist)
                cnt = 0
                for l2 in out[loops[m.group(1)]:]:
                    i2 = Ins(l2)
                    if not i2.is_ins:
                        continue
                    dist = 0
                    for p in reversed(h2[-24:]):
                        if need(p, i2) > dist:
                            raise ValueError(f"back-edge hazard: {p.line} -> {i2.line}")
                        dist += p.states
                    h2.append(i2)
                    cnt += 1
                    if cnt > 24:
                        break
                out.append(sub); continue
            if re.match(r"\s*; @reset", sub):
                hist = []
                out.append(sub); continue
            ins = Ins(sub)
            if not ins.is_ins:
                out.append(sub); continue
            dist = 0
            pad = 0
            for p in reversed(hist[-24:]):
                r = need(p, ins)
                if r > dist:
                    pad = max(pad, r - dist)
                dist += p.states
            if pad:
                nop = f"    s_nop {pad - 1}"
                out.append(nop); hist.append(Ins(nop))
            out.append(sub); hist.append(ins)
    return out


import os
STAMPS = os.environ.get("STAMPS", "0") == "1"
WS_STAMP = 0x4000000


class Asm:
    def __init__(self):
        self.lines = []
        self.kidx = 0

    def stamp(self, i):
        if STAMPS:
            self(f"s_memrealtime s[{70+2*i}:{71+2*i}]")
            if i == 0:
                for j in range(1, 8):
                    self(f"s_mov_b32 s{70+2*j}, 0")
                self("s_mov_b32 s94, s2\nv_readfirstlane_b32 s95, v0\ns_memtime s[96:97]\ns_waitcnt lgkmcnt(0)")

    def end(self):
        if STAMPS:
            self(f"""
s_waitcnt vmcnt(0)
s_memrealtime s[84:85]
s_memtime s[98:99]
s_load_dwordx2 s[88:89], s[0:1], 104
s_waitcnt lgkmcnt(0)
s_sub_u32 s82, s98, s96
s_mov_b32 s90, 0x8000000
s_mov_b32 s91, 0x20000
s_lshr_b32 s95, s95, 6
s_lshl_b32 s94, s94, 3
s_add_u32 s94, s94, s95
s_lshl_b32 s94, s94, 5
s_add_u32 s94, s94, {WS_STAMP + self.kidx * 0x40000}
s_mov_b64 exec, 1
""")
            for j in range(8):
                self(f"v_mov_b32 v{j}, s{70+2*j}")
            self("v_mov_b32 v8, 0\nbuffer_store_dwordx4 v[0:3], v8, s[88:91], s94 offen\nbuffer_store_dwordx4 v[4:7], v8, s[88:91], s94 offen offset:16")
        self("s_endpgm")

    def __call__(self, s):
        for l in s.strip("\n").split("\n"):
            l = l.strip()
            if not l:
                continue
            if l.endswith(":") or l.startswith(".") or l.startswith(";"):
                self.lines.append(l)
            else:
                self.lines.append("    " + l)

    def srd(self, d, lo, hi, nbytes):
        self(f"s_mov_b32 s{d}, {lo}\ns_mov_b32 s{d+1}, {hi}\ns_mov_b32 s{d+2}, {nbytes}\ns_mov_b32 s{d+3}, 0x20000")

    def srd_off(self, d, base, off, nbytes):
        self(f"s_add_u32 s{d}, s{base}, {off}\ns_addc_u32 s{d+1}, s{base+1}, 0\n"
             f"s_mov_b32 s{d+2}, {nbytes}\ns_mov_b32 s{d+3}, 0x20000")


def vr(a, n=1):
    return f"v{a}" if n == 1 else f"v[{a}:{a+n-1}]"


def ar(a, n=1):
    return f"a{a}" if n == 1 else f"a[{a}:{a+n-1}]"


def sr(a, n=1):
    return f"s{a}" if n == 1 else f"s[{a}:{a+n-1}]"


def kernel_desc(name, vgpr, sgpr, accum=None):
    if STAMPS:
        sgpr = 100
    if accum is None:
        accum = (vgpr + 3) // 4 * 4
    return f""".p2align 6
.amdhsa_kernel {name}
  .amdhsa_next_free_vgpr {vgpr}
  .amdhsa_next_free_sgpr {sgpr}
  .amdhsa_accum_offset {accum}
  .amdhsa_group_segment_fixed_size 0
  .amdhsa_kernarg_size 112
  .amdhsa_user_sgpr_count 2
  .amdhsa_user_sgpr_kernarg_segment_ptr 1
  .amdhsa_system_sgpr_workgroup_id_x 1
.end_amdhsa_kernel"""


def wprefetch(A, wg, vt, sb, dst):
    A(f"""
v_min_u32 v{vt}, 223, v0
v_mul_u32_u24 v{vt+1}, 4682, v{vt}
v_lshrrev_b32 v{vt+1}, 16, v{vt+1}
v_mul_u32_u24 v{vt+1}, {3584-14*128}, v{vt+1}
v_lshl_add_u32 v{vt+1}, v{vt}, 7, v{vt+1}
v_lshrrev_b32 v{vt+2}, 2, v{vt}
v_and_b32 v{vt}, 3, v{vt}
v_lshlrev_b32 v{vt}, 7, v{vt}
v_lshl_add_u32 v{vt+2}, v{vt+2}, 10, v{vt}
s_lshr_b32 s{sb+5}, s{wg}, 3
s_mul_i32 s{sb+5}, s{sb+5}, 57344
s_bfe_u32 s{sb+6}, s{wg}, 0x10002
s_mul_i32 s{sb+4}, s{sb+6}, 1792
s_lshl_b32 s{sb+6}, s{sb+6}, 9
s_add_u32 s{sb+6}, s{sb+6}, s{sb+5}
s_add_u32 s{sb+5}, s{sb+5}, s{sb+4}
""")
    for i in range(3):
        A.srd(sb, f"s{sb+8+2*i}", f"s{sb+9+2*i}", 1835008)
        A(f"buffer_load_dword v{dst+i}, v{vt+1+(i==2)}, s[{sb}:{sb+3}], s{sb+5+(i==2)} offen")
```

```python
from asmlib import *
from layout import *

LOG2E = "0x3fb8aa3b"
INV2PI = "0x3e22f983"


def cmul(A, d, a, b):
    return [f"v_pk_mul_f32 {vr(d,2)}, {vr(a,2)}, {vr(b,2)} op_sel:[0,0] op_sel_hi:[0,1]",
            f"v_pk_fma_f32 {vr(d,2)}, {vr(a,2)}, {vr(b,2)}, {vr(d,2)} op_sel:[1,1,0] op_sel_hi:[1,0,1] neg_lo:[0,1,0]"]


def interleave(A, chains):
    chains = [list(c) for c in chains if c]
    while chains:
        for c in chains:
            A(c.pop(0))
        chains = [c for c in chains if c]


def kgen(A):
    A("""
s_load_dwordx8 s[4:11], s[0:1], 8
s_load_dwordx2 s[12:13], s[0:1], 40
s_load_dwordx2 s[14:15], s[0:1], 104
v_lshrrev_b32 v1, 6, v0
v_and_b32 v2, 63, v0
v_readfirstlane_b32 s3, v1
s_lshl_b32 s16, s2, 9
v_lshlrev_b32 v3, 1, v0
s_lshr_b32 s17, s3, 1
s_lshl_b32 s18, s2, 1
s_add_u32 s17, s17, s18
s_lshl_b32 s18, s17, 1
v_mov_b32 v4, 0
s_waitcnt lgkmcnt(0)
""")
    A.srd(20, "s4", "s5", 131072)
    A.srd(24, "s6", "s7", 131072)
    A.srd(28, "s8", "s9", 131072)
    A.srd(32, "s10", "s11", 131072)
    A.srd(36, "s12", "s13", 1024)
    A("""
buffer_load_ushort v10, v4, s[36:39], s18 offen
buffer_load_ushort v11, v3, s[20:23], s16 offen
buffer_load_ushort v12, v3, s[24:27], s16 offen
buffer_load_ushort v13, v3, s[28:31], s16 offen
buffer_load_ushort v14, v3, s[32:35], s16 offen
""")
    A(f"s_lshl_b32 s19, s17, 12\ns_add_u32 s19, s19, {WS_KR}")
    A.srd_off(40, 14, "s19", 4096)
    A("""
s_lshl_b32 s44, s3, 14
v_lshlrev_b32 v5, 5, v2
v_lshlrev_b32 v6, 2, v2
v_and_b32 v6, 16, v6
v_add3_u32 v5, v5, v6, s44
v_xor_b32 v6, 16, v5
""")
    A("""
v_lshrrev_b32 v7, 2, v2
v_lshlrev_b32 v7, 5, v7
v_lshlrev_b32 v8, 3, v2
v_and_b32 v8, 24, v8
v_and_b32 v9, 16, v2
v_xor_b32 v8, v8, v9
v_add3_u32 v7, v7, v8, s44
""")
    A("""
s_lshr_b32 s45, s3, 1
s_mul_i32 s45, s45, 6144
s_add_u32 s45, s45, 65536
s_and_b32 s47, s3, 1
s_lshl_b32 s46, s47, 2
s_add_u32 s46, s46, s45
v_and_b32 v8, 15, v2
v_lshrrev_b32 v9, 4, v2
""")
    A("""
v_and_b32 v20, 1, v9
v_lshrrev_b32 v21, 1, v9
v_lshlrev_b32 v16, 3, v8
v_lshl_add_u32 v16, v20, 2, v16
v_lshl_add_u32 v16, v21, 7, v16
v_lshl_add_u32 v16, v16, 3, s46
""")
    A("""
v_cmp_gt_u32 vcc, 2, v9
v_lshlrev_b32 v17, 1, v8
v_lshlrev_b32 v18, 2, v8
v_cndmask_b32 v17, v17, v18, vcc
v_lshl_add_u32 v17, v9, 6, v17
v_add_u32 v17, 256, v17
v_lshl_add_u32 v17, v17, 3, s46
v_mov_b32 v18, 256
v_cndmask_b32 v18, v18, 16, vcc
v_add_u32 v18, v17, v18
""")
    A("""
v_lshl_add_u32 v19, v9, 6, v8
v_add_u32 v19, 512, v19
v_lshl_add_u32 v19, v19, 3, s46
""")
    A("""
s_lshl_b32 s48, s47, 9
s_sub_u32 s48, 2047, s48
v_lshlrev_b32 v20, 3, v2
v_sub_u32 v20, s48, v20
s_mov_b32 s49, 0xffffbd80
""")
    for u in range(2):
        for i in range(0, 8, 2):
            d = 24 + 8 * u + i
            A(f"v_subrev_u32 v21, {1024*u+i}, v20")
            A(f"v_subrev_u32 v22, {1024*u+i+1}, v20")
            A(f"v_cvt_f32_u32 v{d}, v21")
            A(f"v_cvt_f32_u32 v{d+1}, v22")
            A(f"v_cvt_pk_bf16_f32 v23, v{d}, v{d+1}")
            A(f"v_and_b32 v{d}, 0xffff, v23")
            A(f"v_lshrrev_b32 v{d+1}, 16, v23")
            A(f"v_add_u32 v{d}, s49, v{d}")
            A(f"v_add_u32 v{d+1}, s49, v{d+1}")
            if u == 1:
                A(f"v_min_u32 v21, 128, v21")
                A(f"v_min_u32 v22, 128, v22")
                A(f"v_max_i32 v{d}, v{d}, v21")
                A(f"v_max_i32 v{d+1}, v{d+1}, v22")
            A(f"v_lshl_add_u32 v{d}, v{d}, 3, s45")
            A(f"v_lshl_add_u32 v{d+1}, v{d+1}, 3, s45")
    A("""
s_lshl_b32 s48, s47, 10
v_lshl_add_u32 v15, v2, 4, s48
""")
    A(f"""
s_mov_b32 s50, {LOG2E}
s_mov_b32 s51, {INV2PI}
s_waitcnt vmcnt(3)
v_lshlrev_b32 v10, 16, v10
v_lshlrev_b32 v11, 16, v11
v_mul_f32 v10, s50, v10
v_mul_f32 v11, s50, v11
v_exp_f32 v10, v10
v_exp_f32 v11, v11
s_waitcnt vmcnt(0)
v_lshlrev_b32 v12, 16, v12
v_cvt_pk_bf16_f32 v20, v10, v11
v_lshlrev_b32 v13, 16, v13
v_lshlrev_b32 v14, 16, v14
v_lshlrev_b32 v10, 16, v20
v_and_b32 v11, 0xffff0000, v20
v_mul_f32 v11, v11, v10
v_mul_f32 v12, v12, v10
v_mul_f32_e64 v11, -v11, s50
v_mul_f32 v12, s51, v12
v_add_f32 v10, v10, v10
""")
    A.stamp(1)
    X = 40
    P = 72
    Q = 88
    R1 = 104
    R2 = 136
    E8 = 154
    PK = 156
    def direct(d, p, conj=False, t=188):
        return [f"v_mul_f32 v{t}, {p}, v11" if p != "1.0" else f"v_mov_b32 v{t}, v11",
                f"v_mul_f32 v{t+1}, {p}, v12" if p != "1.0" else f"v_mov_b32 v{t+1}, v12",
                f"v_exp_f32 v{t}, v{t}",
                f"v_fract_f32 v{t+1}, v{t+1}",
                f"v_cos_f32 v{d}, v{t+1}",
                f"v_sin_f32 v{d+1}, v{t+1}",
                f"v_mul_f32 v{d}, v{d}, v{t}",
                f"v_mul_f32_e64 v{d+1}, v{d+1}, {'-' if conj else ''}v{t}"]
    interleave(A, [direct(E8, "0x41000000", True, 188), direct(P + 2, "1.0", False, 190), direct(Q, "0x43000000", False, 192)])
    A(f"""
v_mul_f32 v{X}, v13, v10
v_mul_f32_e64 v{X+1}, -v14, v10
v_mov_b32 v{P}, 1.0
v_mov_b32 v{P+1}, 0
""")
    G = {1: Q, 2: R1, 3: R1 + 8, 4: R1 + 16, 5: R1 + 20, 6: R1 + 24, 7: R1 + 28}
    for j in range(8, 17):
        G[j] = R2 + 2 * (j - 8)
    chX, chP, chG = [], [], []
    for b in range(1, 16):
        chX += cmul(A, X + 2 * b, X + 2 * b - 2, E8)
    for k in range(2, 8):
        chP += cmul(A, P + 2 * k, P + 2 * k - 2, P + 2)
    for k in range(1, 8):
        chP += cmul(A, Q + 2 * k, P + 2 * k, Q)
    for j in range(2, 17):
        chG += cmul(A, G[j], G[j - 1], Q)
    interleave(A, [chX, chP, chG])

    def pack_store(base, tile, npos=16, pk=PK):
        for c in range(2):
            for i in range(8):
                if 2 * i + 1 < npos:
                    A(f"v_cvt_pk_bf16_f32 v{pk+8*c+i}, v{base+4*i+c}, v{base+4*i+2+c}")
                elif 2 * i < npos:
                    A(f"v_cvt_pk_bf16_f32 v{pk+8*c+i}, v{base+4*i+c}, 0")
                else:
                    A(f"v_mov_b32 v{pk+8*c+i}, 0")
            A(f"ds_write_b128 v5, {vr(pk+8*c,4)} offset:{tile*4096+c*2048}")
            A(f"ds_write_b128 v6, {vr(pk+8*c+4,4)} offset:{tile*4096+c*2048}")
    pack_store(X, 0, pk=PK)
    pack_store(P, 1, pk=PK + 16)
    c1, c2 = [], []
    for i, k in enumerate((2, 4, 6)):
        c1 += cmul(A, R1 + 2 * (1 + i), R1, P + 2 * k)
        c2 += cmul(A, R1 + 8 + 2 * (1 + i), R1 + 8, P + 2 * k)
    c1 += cmul(A, R1 + 18, R1 + 16, P + 8) + cmul(A, R1 + 22, R1 + 20, P + 8)
    c2 += cmul(A, R1 + 26, R1 + 24, P + 8) + cmul(A, R1 + 30, R1 + 28, P + 8)
    interleave(A, [c1, c2])
    pack_store(R2, 3, npos=9, pk=X)
    pack_store(R1, 2, pk=X + 16)
    F = 72
    A("s_waitcnt lgkmcnt(0)")
    A.stamp(2)
    for t in (0, 1, 3, 2):
        for s in range(4):
            for h in range(2):
                A(f"ds_read_b64_tr_b16 {vr(F+(t*4+s)*4+2*h,2)}, v7 offset:{t*4096+s*1024+h*512}")
        if t == 1:
            A("s_waitcnt lgkmcnt(0)")
    D = 140
    first = True
    for n, t in enumerate((1, 3, 2)):
        if n == 1:
            A("s_waitcnt lgkmcnt(8)")
        if n == 2:
            A("s_waitcnt lgkmcnt(0)")
        for s in range(4):
            c = "0" if s == 0 else vr(D + 4 * t, 4)
            A(f"v_mfma_f32_16x16x32_bf16 {vr(D+4*t,4)}, {vr(F+(t*4+s)*4,4)}, {vr(F+s*4,4)}, {c}")
    for q in range(4):
        A(f"ds_write_b32 v16, v{D+4+q} offset:{8*q}")
    for q in range(4):
        A(f"ds_write_b32 v19, v{D+12+q} offset:{128*q}")
    for q in range(4):
        A(f"ds_write_b32 v{17+q//2}, v{D+8+q} offset:{8*(q&1)}")
    A("s_waitcnt lgkmcnt(0)\ns_barrier")
    A.stamp(3)
    Gt = 40
    for i in range(16):
        A(f"ds_read_b64 {vr(Gt+2*i,2)}, v{24+i}")
        if i == 14:
            A("s_waitcnt lgkmcnt(7)")
    for u in range(2):
        if u == 1:
            A("s_waitcnt lgkmcnt(0)")
        for i in range(8):
            r = Gt + 16 * u + 2 * i
            A(f"v_add_f32 v{r}, v{r}, v{r+1}")
        for i in range(4):
            r = Gt + 16 * u + 4 * i
            A(f"v_cvt_pk_bf16_f32 v{72+4*u+i}, v{r}, v{r+2}")
        A(f"buffer_store_dwordx4 {vr(72+4*u,4)}, v15, s[40:43], 0 offen offset:{2048*u}")
    A.end()


def red32(A, v, t):
    A(f"""
v_add_f32_dpp v{v}, v{v}, v{v} quad_perm:[1,0,3,2] row_mask:0xf bank_mask:0xf
v_add_f32_dpp v{v}, v{v}, v{v} quad_perm:[2,3,0,1] row_mask:0xf bank_mask:0xf
v_add_f32_dpp v{v}, v{v}, v{v} row_half_mirror row_mask:0xf bank_mask:0xf
v_add_f32_dpp v{v}, v{v}, v{v} row_mirror row_mask:0xf bank_mask:0xf
v_mov_b32 v{t}, v{v}
v_permlane16_swap_b32 v{v}, v{t}
v_add_f32 v{v}, v{v}, v{t}
""")


def ln1(A):
    A("""
s_load_dwordx2 s[4:5], s[0:1], 0
s_load_dwordx2 s[14:15], s[0:1], 104
s_load_dwordx4 s[40:43], s[0:1], 64
s_load_dwordx2 s[44:45], s[0:1], 80
s_and_b32 s16, s2, 7
s_lshl_b32 s16, s16, 5
s_lshr_b32 s17, s2, 3
s_add_u32 s16, s16, s17
s_lshl_b32 s17, s16, 13
v_lshrrev_b32 v1, 5, v0
v_and_b32 v2, 31, v0
v_lshlrev_b32 v1, 10, v1
v_lshl_add_u32 v1, v2, 4, v1
v_lshlrev_b32 v3, 2, v0
s_waitcnt lgkmcnt(0)
""")
    A.srd(20, "s4", "s5", 2097152)
    A("""
buffer_load_dwordx4 v[8:11], v1, s[20:23], s17 offen
buffer_load_dwordx4 v[12:15], v1, s[20:23], s17 offen offset:512
s_add_u32 s18, s17, 4096
""")
    for t in range(8):
        A(f"buffer_load_dword v{16+t}, v3, s[20:23], {'s17' if t < 4 else 's18'} offen offset:{(t%4)*1024}")
    A.srd(24, "s14", "s15", 0x400000)
    A("""
s_lshl_b32 s19, s16, 4
v_lshlrev_b32 v4, 13, v0
v_lshrrev_b32 v5, 5, v0
v_lshlrev_b32 v5, 3, v5
s_mov_b32 s28, 0xffff0000
s_mov_b32 s29, 0x3b000000
s_mov_b32 s30, 0x05040100
s_mov_b32 s31, 0x07060302
s_waitcnt vmcnt(8)
""")
    A.stamp(1)
    for i in range(8):
        A(f"v_lshlrev_b32 v{24+2*i}, 16, v{8+i}")
        A(f"v_and_b32 v{25+2*i}, s28, v{8+i}")
    A(f"v_pk_add_f32 v[40:41], v[24:25], v[26:27]")
    A(f"v_pk_add_f32 v[42:43], v[28:29], v[30:31]")
    A(f"v_pk_add_f32 v[44:45], v[32:33], v[34:35]")
    A(f"v_pk_add_f32 v[46:47], v[36:37], v[38:39]")
    A(f"v_pk_add_f32 v[40:41], v[40:41], v[42:43]")
    A(f"v_pk_add_f32 v[44:45], v[44:45], v[46:47]")
    A(f"v_pk_add_f32 v[40:41], v[40:41], v[44:45]")
    A(f"v_add_f32 v40, v40, v41")
    red32(A, 40, 41)
    A("v_mul_f32 v40, s29, v40")
    for i in range(8):
        A(f"v_pk_add_f32 {vr(24+2*i,2)}, {vr(24+2*i,2)}, v[40:41] op_sel_hi:[1,0] neg_lo:[0,1] neg_hi:[0,1]")
    A("v_pk_mul_f32 v[42:43], v[24:25], v[24:25]")
    A("v_pk_mul_f32 v[44:45], v[26:27], v[26:27]")
    for i in range(2, 8):
        d = 42 + 2 * (i & 1)
        A(f"v_pk_fma_f32 {vr(d,2)}, {vr(24+2*i,2)}, {vr(24+2*i,2)}, {vr(d,2)}")
    A("v_pk_add_f32 v[42:43], v[42:43], v[44:45]")
    A("v_add_f32 v42, v42, v43")
    red32(A, 42, 43)
    A("""
v_mul_f32 v42, s29, v42
v_cvt_pk_bf16_f32 v44, v40, v42
v_lshlrev_b32 v40, 16, v44
v_and_b32 v42, s28, v44
v_add_f32 v42, 0x3727c5ac, v42
v_cvt_pk_bf16_f32 v42, v42, v42
v_lshlrev_b32 v42, 16, v42
v_sqrt_f32 v42, v42
v_cvt_pk_bf16_f32 v42, v42, v42
v_lshlrev_b32 v42, 16, v42
v_rcp_f32 v41, v42
v_mov_b32 v6, 0
ds_write_b64 v5, v[40:41]
s_waitcnt lgkmcnt(0)
s_barrier
ds_read_b128 v[48:51], v6
ds_read_b128 v[52:55], v6 offset:16
ds_read_b128 v[56:59], v6 offset:32
ds_read_b128 v[60:63], v6 offset:48
s_waitcnt vmcnt(0)
""")
    A.stamp(2)
    if os.environ.get("PF1", "1") == "1":
        A("v_lshrrev_b32 v80, 6, v0\nv_readfirstlane_b32 s3, v80\ns_and_b32 s48, s2, 3\ns_cmp_lg_u32 s3, s48\ns_cbranch_scc1 K1_nopf")
        wprefetch(A, 2, 80, 32, 84)
        A("K1_nopf:")
    for i in range(4):
        A(f"v_perm_b32 v{64+i}, v{17+2*i}, v{16+2*i}, s30")
        A(f"v_perm_b32 v{68+i}, v{17+2*i}, v{16+2*i}, s31")
    A(f"s_add_u32 s18, s19, {WS_XT}")
    A(f"s_add_u32 s17, s18, 4096")
    A("buffer_store_dwordx4 v[64:67], v4, s[24:27], s18 offen")
    A("buffer_store_dwordx4 v[68:71], v4, s[24:27], s17 offen")
    for t in range(8):
        A(f"v_lshlrev_b32 v{24+2*t}, 16, v{16+t}")
        A(f"v_and_b32 v{25+2*t}, s28, v{16+t}")
    A("s_waitcnt lgkmcnt(0)")
    for t in range(8):
        A(f"v_pk_add_f32 {vr(24+2*t,2)}, {vr(24+2*t,2)}, {vr(48+2*t,2)} op_sel_hi:[1,0] neg_lo:[0,1] neg_hi:[0,1]")
    for t in range(8):
        A(f"v_cvt_pk_bf16_f32 v{16+t}, v{24+2*t}, v{25+2*t}")
    for t in range(8):
        A(f"v_lshlrev_b32 v{24+2*t}, 16, v{16+t}")
        A(f"v_and_b32 v{25+2*t}, s28, v{16+t}")
    for t in range(8):
        A(f"v_pk_mul_f32 {vr(24+2*t,2)}, {vr(24+2*t,2)}, {vr(48+2*t,2)} op_sel:[0,1] op_sel_hi:[1,1]")
    for i in range(4):
        A(f"v_cvt_pk_bf16_f32 v{72+i}, v{24+4*i}, v{26+4*i}")
        A(f"v_cvt_pk_bf16_f32 v{76+i}, v{25+4*i}, v{27+4*i}")
    A(f"s_add_u32 s18, s19, {WS_UT}")
    A(f"s_add_u32 s17, s18, 4096")
    A("buffer_store_dwordx4 v[72:75], v4, s[24:27], s18 offen")
    A("buffer_store_dwordx4 v[76:79], v4, s[24:27], s17 offen")
    A.end()


def k1(A):
    A("""
.globl k1_kernel
.p2align 8
.type k1_kernel,@function
k1_kernel:
""")
    A.kidx = 0
    A.stamp(0)
    A(f"""
s_cmp_ge_u32 s2, 256
s_cbranch_scc1 K1_ln
""")
    kgen(A)
    A("""
; @reset
K1_ln:
s_cmp_ge_u32 s2, 512
s_cbranch_scc1 K1_done
s_sub_u32 s2, s2, 256
""")
    ln1(A)
    A("K1_done:\ns_endpgm")
    return dict(name="k1_kernel", grid=512, block=256, lds=65536 + 12288, vgpr=196, sgpr=56)
```

```python
from asmlib import *
from layout import *

KCOPY = 4160
CH_K = 4 * KCOPY
CH_U = 4608
CH = CH_K + CH_U
XCH = 2 * CH


def conv(A):
    A("""
s_load_dwordx2 s[4:5], s[0:1], 48
s_load_dwordx2 s[14:15], s[0:1], 104
s_load_dwordx4 s[64:67], s[0:1], 64
s_load_dwordx2 s[68:69], s[0:1], 80
v_lshrrev_b32 v1, 6, v0
v_and_b32 v2, 63, v0
v_readfirstlane_b32 s3, v1
s_lshr_b32 s16, s3, 1
s_and_b32 s17, s3, 1
s_lshl_b32 s18, s2, 1
s_add_u32 s18, s18, s16
s_lshl_b32 s19, s18, 12
v_lshlrev_b32 v3, 4, v2
""")
    A(f"""
s_mul_i32 s44, s16, {CH}
s_lshl_b32 s45, s17, 11
s_add_u32 s46, s44, s45
s_add_u32 s46, s46, {CH_K + 512}
s_lshl_b32 s47, s17, 10
s_add_u32 s48, s19, {WS_KR}
s_add_u32 s49, s19, s45
v_add_u32 v4, s47, v3
s_waitcnt lgkmcnt(0)
""")
    A.srd_off(20, 14, "s48", 4096)
    A.srd(24, "s14", "s15", 0x800000)
    A.srd(28, "s4", "s5", 1024)
    for u in range(2):
        b = 8 + 12 * u
        A(f"buffer_load_dwordx4 {vr(b,4)}, v4, s[20:23], 0 offen offset:{2048*u}")
        A(f"buffer_load_dwordx4 {vr(b+4,4)}, v4, s[20:23], 0 offen offset:{2048*u+4}")
        A(f"buffer_load_dword v{b+8}, v4, s[20:23], 0 offen offset:{2048*u+20}")
    A(f"""
s_mov_b32 m0, s46
s_add_u32 s49, s49, {WS_UT}
buffer_load_dwordx4 v3, s[24:27], s49 offen lds
buffer_load_dwordx4 v3, s[24:27], s49 offen offset:1024 lds
""")
    A(f"""
v_and_b32 v5, 15, v2
v_lshrrev_b32 v6, 4, v2
v_lshlrev_b32 v7, 5, v5
v_lshl_add_u32 v7, v6, 3, v7
s_add_u32 s50, s49, {WS_XT - WS_UT}
s_add_u32 s51, s49, {WS_HT - WS_UT}
s_lshl_b32 s52, s18, 1
v_mov_b32 v32, 0
""")
    for t in range(4):
        A(f"buffer_load_dwordx2 {vr(200+2*t,2)}, v7, s[24:27], s50 offen offset:{512*t}")
    A("buffer_load_ushort v208, v32, s[28:31], s52 offen")
    A(f"""
v_mov_b32 v33, 0
v_mov_b32 v34, 0
v_mov_b32 v35, 0
v_add_u32 v36, {CH_K}, v3
v_subrev_u32 v37, 32, v2
v_lshrrev_b32 v38, 1, v37
v_and_b32 v37, 1, v37
v_mul_u32_u24 v38, {KCOPY}, v38
v_lshl_add_u32 v38, v37, 4, v38
v_add_u32 v38, 4096, v38
v_cmp_gt_u32 vcc, 32, v2
v_cndmask_b32 v36, v38, v36, vcc
v_add_u32 v36, s44, v36
v_cmp_gt_u32 vcc, 40, v2
s_and_saveexec_b64 s[54:55], vcc
ds_write_b128 v36, v[32:35]
s_mov_b64 exec, s[54:55]
""")
    A(f"""
v_sub_u32 v36, 15, v5
v_and_b32 v37, 3, v36
v_lshrrev_b32 v36, 2, v36
v_mul_u32_u24 v40, {KCOPY}, v37
v_lshl_add_u32 v40, v36, 3, v40
v_lshl_add_u32 v40, v6, 4, v40
s_lshl_b32 s53, s17, 8
s_sub_u32 s53, s44, s53
v_add_u32 v40, s53, v40
v_lshlrev_b32 v41, 5, v5
v_lshl_add_u32 v41, v6, 4, v41
s_add_u32 s53, s53, {CH_K}
v_add_u32 v41, s53, v41
v_add_u32 v42, s44, v4
""")
    for u in range(2):
        b = 8 + 12 * u
        A(f"s_waitcnt vmcnt({10 - 3 * u})")
        if u == 0:
            A.stamp(1)
        o1, o3 = 44 + 8 * u, 48 + 8 * u
        A(f"ds_write_b128 v42, {vr(b,4)} offset:{2048*u}")
        A(f"ds_write_b128 v42, {vr(b+4,4)} offset:{2*KCOPY+2048*u}")
        for i in range(4):
            A(f"v_alignbit_b32 v{o1+i}, v{b+4+i}, v{b+i}, 16")
        A(f"ds_write_b128 v42, {vr(o1,4)} offset:{KCOPY+2048*u}")
        for i in range(4):
            A(f"v_alignbit_b32 v{o3+i}, v{b+5+i}, v{b+4+i}, 16")
        A(f"ds_write_b128 v42, {vr(o3,4)} offset:{3*KCOPY+2048*u}")
    A("s_waitcnt vmcnt(5) lgkmcnt(0)\ns_barrier")
    A.stamp(2)
    if os.environ.get("PF2", "1") == "1":
        wprefetch(A, 2, 44, 56, 209)
    ACC = 8
    FA = [64, 128]

    def reads(w, buf):
        L = []
        fa, fb = FA[buf], FA[buf] + 32
        for i in range(8):
            L.append(f"ds_read_b128 {vr(fb+4*i,4)}, v41 offset:{480+512*i-64*w}")
            L.append(f"ds_read_b64 {vr(fa+4*i,2)}, v40 offset:{4032-64*w-512*i}")
            L.append(f"ds_read_b64 {vr(fa+4*i+2,2)}, v40 offset:{4032-64*w-512*i+8}")
        return L
    order = []
    for m in range(8):
        for i in range(m + 1):
            for d in range(m + 1):
                if max(i, d) == m and i + d <= 7:
                    order.append((m, i, d))
    started = set()
    cur = reads(0, 0)
    for r in cur[:15]:
        A(r)
    pend = cur[15:]
    issued = 15
    for w in range(4):
        buf = w & 1
        fa, fb = FA[buf], FA[buf] + 32
        nxt = reads(w + 1, buf ^ 1) if w < 3 else []
        queue = pend + nxt
        base = 24 * w
        lastm = -1
        for n, (m, i, d) in enumerate(order):
            if m != lastm:
                needn = base + 3 * (m + 1)
                while issued < needn:
                    A(queue.pop(0)); issued += 1
                out = issued - needn
                if w == 0 or m in (0, 4):
                    if w > 0:
                        tgt = base + (15 if m == 0 else 24)
                        out = issued - tgt
                    A(f"s_waitcnt lgkmcnt({min(out, 15)})")
                lastm = m
            t = i + d
            c = vr(ACC + 4 * t, 4) if t in started else "0"
            started.add(t)
            A(f"v_mfma_f32_16x16x32_bf16 {vr(ACC+4*t,4)}, {vr(fa+4*i,4)}, {vr(fb+4*d,4)}, {c}")
            if queue and (w == 0 or n >= 2):
                A(queue.pop(0)); issued += 1
        pend = queue
        assert not pend, len(pend)
    A.stamp(3)
    A(f"""
s_lshl_b32 s53, s3, 12
s_add_u32 s53, s53, {XCH}
v_add_u32 v42, s53, v3
s_xor_b32 s53, s3, 1
s_lshl_b32 s53, s53, 12
s_add_u32 s53, s53, {XCH}
v_add_u32 v43, s53, v3
v_add_u32 v44, s46, v7
s_cmp_eq_u32 s17, 0
s_cbranch_scc1 K2_x0
""")
    assert XCH % 8192 == 0 or True
    for t in range(4):
        A(f"ds_write_b128 v42, {vr(ACC+4*t,4)} offset:{1024*t}")
    A("s_nop 1")
    for i in range(16):
        A(f"v_mov_b32 v{ACC+i}, v{ACC+16+i}")
    A("s_branch K2_x1\nK2_x0:\ns_nop 7")
    for t in range(4):
        A(f"ds_write_b128 v42, {vr(ACC+16+4*t,4)} offset:{1024*t}")
    A("K2_x1:")
    for t in range(4):
        A(f"ds_read_b64 {vr(64+2*t,2)}, v44 offset:{512*t}")
    A("s_waitcnt lgkmcnt(0)\ns_barrier")
    for t in range(4):
        A(f"ds_read_b128 {vr(72+4*t,4)}, v43 offset:{1024*t}")
    A(f"""
s_mov_b32 s28, 0xffff0000
s_waitcnt vmcnt({3 if os.environ.get("PF2", "1") == "1" else 0})
v_lshlrev_b32 v208, 16, v208
""")
    A.stamp(4)
    for i in range(8):
        A(f"v_lshlrev_b32 v{88+2*i}, 16, v{64+i}")
        A(f"v_and_b32 v{89+2*i}, s28, v{64+i}")
    for i in range(8):
        A(f"v_pk_mul_f32 {vr(88+2*i,2)}, {vr(88+2*i,2)}, v[208:209] op_sel_hi:[1,0]")
    for i in range(8):
        A(f"v_cvt_pk_bf16_f32 v{64+i}, v{88+2*i}, v{89+2*i}")
    for i in range(8):
        A(f"v_lshlrev_b32 v{88+2*i}, 16, v{64+i}")
        A(f"v_and_b32 v{89+2*i}, s28, v{64+i}")
        A(f"v_lshlrev_b32 v{104+2*i}, 16, v{200+i}")
        A(f"v_and_b32 v{105+2*i}, s28, v{200+i}")
    A("s_waitcnt lgkmcnt(0)")
    for i in range(8):
        A(f"v_pk_add_f32 {vr(ACC+2*i,2)}, {vr(ACC+2*i,2)}, {vr(72+2*i,2)}")
    def rnd(base):
        for i in range(8):
            A(f"v_cvt_pk_bf16_f32 v{64+i}, v{base+2*i}, v{base+2*i+1}")
        for i in range(8):
            A(f"v_lshlrev_b32 v{base+2*i}, 16, v{64+i}")
            A(f"v_and_b32 v{base+2*i+1}, s28, v{64+i}")
    rnd(ACC)
    for i in range(8):
        A(f"v_pk_add_f32 {vr(ACC+2*i,2)}, {vr(ACC+2*i,2)}, {vr(88+2*i,2)}")
    rnd(ACC)
    for i in range(8):
        A(f"v_pk_add_f32 {vr(ACC+2*i,2)}, {vr(ACC+2*i,2)}, {vr(104+2*i,2)}")
    for i in range(8):
        A(f"v_cvt_pk_bf16_f32 v{64+i}, v{ACC+2*i}, v{ACC+2*i+1}")
    for t in range(4):
        A(f"buffer_store_dwordx2 {vr(64+2*t,2)}, v7, s[24:27], s51 offen offset:{512*t}")
    A.end()


def colsum(A):
    A("""
s_load_dwordx4 s[4:7], s[0:1], 64
s_load_dwordx2 s[14:15], s[0:1], 104
s_mul_i32 s16, s2, 2341
s_lshr_b32 s16, s16, 16
s_mul_i32 s17, s16, 28
s_sub_u32 s17, s2, s17
v_lshrrev_b32 v1, 6, v0
v_and_b32 v2, 63, v0
v_mul_u32_u24 v3, 57344, v1
v_lshl_add_u32 v3, v2, 2, v3
s_cmp_ge_u32 s17, 14
s_cselect_b32 s18, 14, 0
s_sub_u32 s18, s17, s18
s_lshl_b32 s18, s18, 8
s_mul_i32 s19, s16, 229376
s_add_u32 s18, s18, s19
s_waitcnt lgkmcnt(0)
s_cmp_ge_u32 s17, 14
s_cselect_b32 s20, s6, s4
s_cselect_b32 s21, s7, s5
s_mov_b32 s22, 1835008
s_mov_b32 s23, 0x20000
""")
    for r in range(16):
        A(f"buffer_load_dword v{8+r}, v3, s[20:23], s18 offen")
        if r < 15:
            A("s_add_u32 s18, s18, 3584")
    A.srd_off(24, 14, WS_CS, 8 * 3584 * 4)
    A("""
s_mov_b32 s28, 0xffff0000
v_lshlrev_b32 v4, 3, v0
v_lshlrev_b32 v5, 3, v2
s_mul_i32 s19, s16, 14336
s_lshl_b32 s18, s17, 9
s_add_u32 s19, s19, s18
""")
    for r in range(16):
        if r % 4 == 0:
            A(f"s_waitcnt vmcnt({12 - r})")
        d = 24 + 2 * (r % 2)
        if r < 2:
            A(f"v_lshlrev_b32 v{d}, 16, v{8+r}\nv_and_b32 v{d+1}, s28, v{8+r}")
        else:
            t = 28 + 2 * (r % 2)
            A(f"v_lshlrev_b32 v{t}, 16, v{8+r}\nv_and_b32 v{t+1}, s28, v{8+r}")
            A(f"v_pk_add_f32 {vr(d,2)}, {vr(d,2)}, {vr(t,2)}")
    A("""
v_pk_add_f32 v[24:25], v[24:25], v[26:27]
ds_write_b64 v4, v[24:25]
s_waitcnt lgkmcnt(0)
s_barrier
v_readfirstlane_b32 s3, v1
s_cmp_lg_u32 s3, 0
s_cbranch_scc1 K2_done
ds_read_b64 v[26:27], v5 offset:512
ds_read_b64 v[28:29], v5 offset:1024
ds_read_b64 v[30:31], v5 offset:1536
s_waitcnt lgkmcnt(0)
v_pk_add_f32 v[24:25], v[24:25], v[26:27]
v_pk_add_f32 v[28:29], v[28:29], v[30:31]
v_pk_add_f32 v[24:25], v[24:25], v[28:29]
buffer_store_dwordx2 v[24:25], v5, s[24:27], s19 offen
""")


def k2(A):
    A("""
.globl k2_kernel
.p2align 8
.type k2_kernel,@function
k2_kernel:
; @reset
""")
    A.kidx = 1
    A.stamp(0)
    A(f"""
s_cmp_ge_u32 s2, 256
s_cbranch_scc1 K2_cs
""")
    conv(A)
    A("""
; @reset
K2_cs:
s_cmp_ge_u32 s2, 480
s_cbranch_scc1 K2_zero
s_sub_u32 s2, s2, 256
""")
    colsum(A)
    A(f"""
s_endpgm
K2_zero:
s_cmp_ge_u32 s2, 488
s_cbranch_scc1 K2_done
s_load_dwordx2 s[14:15], s[0:1], 104
s_sub_u32 s2, s2, 480
s_lshl_b32 s16, s2, 12
v_lshlrev_b32 v1, 4, v0
v_mov_b32 v4, 0
v_mov_b32 v5, 0
v_mov_b32 v6, 0
v_mov_b32 v7, 0
s_waitcnt lgkmcnt(0)
""")
    A.srd_off(24, 14, WS_CS + MI_ST, 32768)
    A("buffer_store_dwordx4 v[4:7], v1, s[24:27], s16 offen")
    A("K2_done:\ns_endpgm")
    return dict(name="k2_kernel", grid=488, block=256, lds=XCH + 16384, vgpr=212, sgpr=72)
```

```python
from asmlib import *
from layout import *

SLOT = 22784
NSLOT = 7
W1O = 8192
W3O = 8192 + 7296
CSO = NSLOT * SLOT
STO = CSO + 896
LDS = STO + 2048


def slot_next(A, s):
    A(f"s_add_u32 s{s}, s{s}, {SLOT}\ns_cmp_eq_u32 s{s}, {SLOT*NSLOT}\ns_cselect_b32 s{s}, 0, s{s}")


def loader(A, which):
    def wvoff(d, i, comp):
        A(f"""
v_add_u32 v8, {64*i}, v2
v_mul_u32_u24 v9, 4682, v8
v_lshrrev_b32 v9, 16, v9
v_mul_u32_u24 v10, {3584-14*16}, v9
v_lshl_add_u32 v{d}, v8, 4, v10
""")
        if comp:
            A(f"v_subrev_u32 v{d}, {comp}, v{d}")
    A("s_mul_i32 s33, s17, 224")
    if which == 0:
        A("""
v_lshrrev_b32 v8, 4, v2
v_and_b32 v9, 15, v2
v_lshlrev_b32 v10, 2, v8
v_xor_b32 v9, v9, v10
v_lshlrev_b32 v9, 4, v9
v_lshl_add_u32 v16, v8, 12, v9
""")
        for i in range(1, 4):
            A(f"v_add_u32 v{16+i}, {i*(16384-1024)}, v16")
        for i in range(3):
            wvoff(20 + i, i, 1024 * i)
        A("s_lshl_b32 s32, s16, 8")
    else:
        for n, i in enumerate(range(3, 7)):
            wvoff(16 + n, i, 1024 * n)
        for i in range(7):
            wvoff(20 + i, i, 1024 * (i % 4))
    A("s_mov_b32 s34, 0")

    def issue():
        if which == 0:
            A("s_mov_b32 m0, s34\ns_add_u32 s35, s32, 0x10000")
            for i in range(4):
                A(f"buffer_load_dwordx4 v{16+i}, s[20:23], s32 offen offset:{1024*i} lds")
            A("s_add_u32 m0, s34, 4096\ns_add_u32 s32, s32, 0x20000")
            for i in range(4):
                A(f"buffer_load_dwordx4 v{16+i}, s[20:23], s35 offen offset:{1024*i} lds")
            A(f"s_add_u32 m0, s34, {W1O}")
            for i in range(3):
                A(f"buffer_load_dwordx4 v{20+i}, s[24:27], s33 offen offset:{1024*i} lds")
        else:
            A(f"s_add_u32 m0, s34, {W1O+3072}")
            for i in range(4):
                A(f"buffer_load_dwordx4 v{16+i}, s[24:27], s33 offen offset:{1024*i} lds")
            A(f"s_add_u32 m0, s34, {W3O}")
            for i in range(4):
                A(f"buffer_load_dwordx4 v{20+i}, s[28:31], s33 offen offset:{1024*i} lds")
            A(f"s_add_u32 m0, s34, {W3O+4096}")
            for i in range(3):
                A(f"buffer_load_dwordx4 v{24+i}, s[28:31], s33 offen offset:{1024*i} lds")
        A(f"s_add_u32 s33, s33, {32*3584}")
        slot_next(A, 34)
    L = f"K3_ld{which}"
    A.stamp(1)
    A(f"s_mov_b32 s36, 0\n{L}:")
    A(f"s_cmp_lt_u32 s36, 5\ns_cbranch_scc1 {L}_i\ns_waitcnt vmcnt(44)\ns_barrier\n{L}_i:")
    issue()
    A(f"s_add_u32 s36, s36, 1\ns_cmp_lt_u32 s36, 16\ns_cbranch_scc1 {L}\n; @loop_end {L}")
    for n in (44, 33, 22, 11, 0):
        A(f"s_waitcnt vmcnt({n})\ns_barrier")
    A.end()


def stats(A):
    A(f"""
s_sub_u32 s32, s3, 6
s_mul_i32 s33, s32, 7168
s_mul_i32 s34, s17, 448
s_add_u32 s33, s33, s34
v_lshlrev_b32 v3, 3, v2
v_min_u32 v3, 440, v3
""")
    A.srd_off(36, 14, WS_CS, 8 * 3584 * 4)
    for r in range(8):
        A(f"buffer_load_dwordx2 {vr(32+2*r,2)}, v3, s[36:39], s33 offen")
        if r < 7:
            A(f"s_add_u32 s33, s33, 14336")
    A(f"""
v_lshrrev_b32 v8, 4, v2
v_and_b32 v9, 15, v2
v_lshlrev_b32 v10, 2, v8
v_xor_b32 v10, v9, v10
v_lshlrev_b32 v10, 4, v10
v_lshl_add_u32 v4, v8, 8, v10
s_lshl_b32 s34, s32, 12
v_add_u32 v4, s34, v4
v_lshlrev_b32 v5, 6, v9
v_lshl_add_u32 v5, v8, 4, v5
s_lshl_b32 s34, s32, 10
s_add_u32 s34, s34, {STO}
v_add_u32 v5, s34, v5
s_mul_i32 s34, s32, 448
s_add_u32 s34, s34, {CSO}
v_add_u32 v3, s34, v3
s_mov_b32 s28, 0xffff0000
""")
    for i in range(16):
        A(f"v_mov_b32 v{64+i}, 0")
    A("s_waitcnt vmcnt(0)")
    for r in range(0, 8, 2):
        A(f"v_pk_add_f32 {vr(32+2*r,2)}, {vr(32+2*r,2)}, {vr(34+2*r,2)}")
    A("""
v_pk_add_f32 v[32:33], v[32:33], v[36:37]
v_pk_add_f32 v[40:41], v[40:41], v[44:45]
v_pk_add_f32 v[32:33], v[32:33], v[40:41]
ds_write_b64 v3, v[32:33]
s_mov_b32 s34, 0
s_mov_b32 s36, 0
K3_st:
v_add_u32 v6, s34, v4
s_barrier
""")
    for n in range(4):
        A(f"ds_read_b128 {vr(16+4*n,4)}, v6 offset:{1024*n}")
    slot_next(A, 34)
    for n in range(4):
        A(f"s_waitcnt lgkmcnt({3-n})")
        for i in range(4):
            A(f"v_lshlrev_b32 v{48+2*i}, 16, v{16+4*n+i}")
            A(f"v_and_b32 v{49+2*i}, s28, v{16+4*n+i}")
        for i in range(4):
            A(f"v_pk_add_f32 {vr(64+2*i,2)}, {vr(64+2*i,2)}, {vr(48+2*i,2)}")
            A(f"v_pk_fma_f32 {vr(72+2*i,2)}, {vr(48+2*i,2)}, {vr(48+2*i,2)}, {vr(72+2*i,2)}")
    A("s_add_u32 s36, s36, 1\ns_cmp_lt_u32 s36, 16\ns_cbranch_scc1 K3_st\n; @loop_end K3_st")
    A("s_barrier")
    for b in (64, 72):
        for e in range(4):
            A(f"v_permlane32_swap_b32 v{b+e}, v{b+e+4}")
    for b in (64, 72):
        for e in range(4):
            A(f"v_add_f32 v{b+e}, v{b+e}, v{b+e+4}")
    for b in (64, 72):
        for e in range(2):
            A(f"v_permlane16_swap_b32 v{b+e}, v{b+e+2}")
    A("""
v_add_f32 v16, v64, v66
v_add_f32 v17, v72, v74
v_add_f32 v18, v65, v67
v_add_f32 v19, v73, v75
ds_write_b128 v5, v[16:19]
s_waitcnt lgkmcnt(0)
s_barrier
""")
    A.end()


def compute(A):
    X, Y, ACC = 32, 64, 96
    A(f"""
v_lshrrev_b32 v8, 5, v2
v_bfe_u32 v9, v2, 2, 2
v_bfe_u32 v10, v2, 4, 1
v_and_b32 v11, 3, v2
v_lshl_add_u32 v12, v8, 3, v9
v_xor_b32 v13, s3, v9
v_lshlrev_b32 v4, 8, v12
v_lshl_add_u32 v4, v13, 6, v4
v_lshl_add_u32 v4, v10, 5, v4
v_lshl_add_u32 v4, v11, 3, v4
v_mul_u32_u24 v5, 224, v12
v_mul_u32_u24 v13, {W3O-W1O}, v10
v_add3_u32 v5, v5, v13, 0
v_lshl_add_u32 v5, v11, 3, v5
v_add_u32 v5, {W1O}, v5
v_mov_b32 v6, v4
v_mov_b32 v7, v5
""")
    for i in range(112):
        A(f"v_mov_b32 v{ACC+i}, 0")

    def reads(S, ks):
        L = []
        for rd in range(2):
            L.append(f"ds_read_b64_tr_b16 {vr(S+2*rd,2)}, v6 offset:{ks*4096+rd*1024}")
        for j in range(7):
            for rd in range(2):
                L.append(f"ds_read_b64_tr_b16 {vr(S+4+4*j+2*rd,2)}, v7 offset:{ks*3584+rd*896+j*32}")
        return L

    def kstep(S, nxt, extra=()):
        per = [2, 2, 3, 2, 2, 3, 2]
        issued = 0
        extra = list(extra)
        for j in range(7):
            if j == 0:
                A("s_waitcnt lgkmcnt(6)")
            if j == 4:
                A(f"s_waitcnt lgkmcnt({issued})")
            A(f"v_mfma_f32_32x32x16_bf16 {vr(ACC+16*j,16)}, {vr(S+4+4*j,4)}, {vr(S,4)}, {vr(ACC+16*j,16)}")
            for _ in range(per[j]):
                A(nxt.pop(0)); issued += 1
            if extra and j in (0, 1, 3, 4):
                A(extra.pop(0))
        assert not nxt and not extra
    A("s_mov_b32 s34, 0\ns_mov_b32 s36, 0\ns_barrier")
    A.stamp(1)
    for r in reads(X, 0):
        A(r)
    A("; @loop_begin K3_c\nK3_c:")
    kstep(X, reads(Y, 1), [f"s_add_u32 s34, s34, {SLOT}", f"s_cmp_eq_u32 s34, {SLOT*NSLOT}", "s_cselect_b32 s34, 0, s34", "s_add_u32 s36, s36, 1"])
    A("v_add_u32 v6, s34, v4\nv_add_u32 v7, s34, v5\ns_barrier")
    kstep(Y, reads(X, 0), ["s_cmp_lt_u32 s36, 16"])
    A("s_cbranch_scc1 K3_c\n; @loop_end K3_c")
    A.stamp(2)
    A(f"""
v_and_b32 v8, 31, v2
s_lshl_b32 s34, s3, 8
s_add_u32 s34, s34, {STO}
v_lshl_add_u32 v8, v8, 3, s34
v_lshrrev_b32 v9, 5, v2
v_lshlrev_b32 v9, 4, v9
v_add_u32 v9, {CSO}, v9
v_lshlrev_b32 v10, 4, v2
s_lshl_b32 s34, s16, 2
s_add_u32 s34, s34, s3
s_mul_i32 s34, s34, 112
s_mul_i32 s35, s17, 7
s_add_u32 s34, s34, s35
s_lshl_b32 s34, s34, 10
s_mov_b32 s28, 0xffff0000
s_mov_b32 s29, 0x3b000000
s_waitcnt lgkmcnt(0)
s_barrier
ds_read_b64 v[12:13], v8
ds_read_b64 v[14:15], v8 offset:1024
""")
    A.srd_off(36, 14, WS_HH, 64 * 112 * 1024)

    def csreads(j, S):
        for mat in range(2):
            for hq in range(2):
                A(f"ds_read_b128 {vr(S+8*mat+4*hq,4)}, v9 offset:{mat*448+j*64+hq*32}")
    csreads(0, X)
    A("""
s_waitcnt lgkmcnt(4)
v_pk_add_f32 v[12:13], v[12:13], v[14:15]
v_mul_f32 v12, s29, v12
v_mul_f32 v13, s29, v13
v_fma_f32 v13, -v12, v12, v13
v_max_f32 v13, 0, v13
v_cvt_pk_bf16_f32 v14, v12, v13
v_lshlrev_b32 v12, 16, v14
v_and_b32 v13, s28, v14
v_add_f32 v13, 0x3727c5ac, v13
v_cvt_pk_bf16_f32 v13, v13, v13
v_lshlrev_b32 v13, 16, v13
v_sqrt_f32 v13, v13
v_cvt_pk_bf16_f32 v13, v13, v13
v_lshlrev_b32 v13, 16, v13
v_rcp_f32 v14, v13
v_mul_f32 v15, v13, v13
v_mul_f32 v14, 0xbfb8aa3b, v14
""")
    A.stamp(3)
    T = 64
    for j in range(7):
        S = X + 16 * (j & 1)
        if j < 6:
            csreads(j + 1, X + 16 * ((j + 1) & 1))
            A("s_waitcnt lgkmcnt(4)")
        else:
            A("s_waitcnt lgkmcnt(0)")
        a = ACC + 16 * j
        for p in range(8):
            A(f"v_pk_fma_f32 {vr(a+2*p,2)}, {vr(S+2*p,2)}, v[12:13], {vr(a+2*p,2)} op_sel_hi:[1,0,1] neg_lo:[1,0,0] neg_hi:[1,0,0]")
        for p in range(4):
            A(f"v_pk_mul_f32 {vr(T+2*p,2)}, {vr(a+2*p,2)}, v[14:15] op_sel_hi:[1,0]")
        for p in range(8):
            A(f"v_exp_f32 v{T+p}, v{T+p}")
        for p in range(4):
            A(f"v_pk_mul_f32 {vr(a+2*p,2)}, {vr(a+2*p,2)}, {vr(a+8+2*p,2)}")
        for p in range(4):
            A(f"v_pk_fma_f32 {vr(T+2*p,2)}, {vr(T+2*p,2)}, v[14:15], v[14:15] op_sel:[0,1,1] op_sel_hi:[1,1,1]")
        for p in range(8):
            A(f"v_rcp_f32 v{T+p}, v{T+p}")
        for p in range(4):
            A(f"v_pk_mul_f32 {vr(a+2*p,2)}, {vr(a+2*p,2)}, {vr(T+2*p,2)}")
        for p in range(4):
            A(f"v_cvt_pk_bf16_f32 v{a+8+p}, v{a+2*p}, v{a+2*p+1}")
        if j == 4:
            A("s_add_u32 s34, s34, 4096")
        A(f"buffer_store_dwordx4 {vr(a+8,4)}, v10, s[36:39], s34 offen offset:{1024*(j%4)}")
    A.end()


def k3(A):
    A(f"""
.globl k3_kernel
.p2align 8
.type k3_kernel,@function
k3_kernel:
; @reset
""")
    A.kidx = 2
    A.stamp(0)
    A(f"""
s_cmp_ge_u32 s2, 256
s_cbranch_scc1 K3_done
s_load_dwordx4 s[4:7], s[0:1], 64
s_load_dwordx2 s[14:15], s[0:1], 104
v_lshrrev_b32 v1, 6, v0
v_and_b32 v2, 63, v0
v_readfirstlane_b32 s3, v1
s_and_b32 s16, s2, 1
s_lshl_b32 s16, s16, 3
s_bfe_u32 s18, s2, 0x30003
s_add_u32 s16, s16, s18
s_bfe_u32 s17, s2, 0x20001
s_lshl_b32 s17, s17, 2
s_lshr_b32 s18, s2, 6
s_add_u32 s17, s17, s18
s_waitcnt lgkmcnt(0)
s_cmp_lt_u32 s3, 4
s_cbranch_scc1 K3_comp
s_cmp_ge_u32 s3, 6
s_cbranch_scc1 K3_stats
""")
    A.srd_off(20, 14, WS_HT, 0x200000)
    A.srd(24, "s4", "s5", 1835008)
    A.srd(28, "s6", "s7", 1835008)
    A("s_cmp_eq_u32 s3, 5\ns_cbranch_scc1 K3_l1")
    loader(A, 0)
    A("; @reset\nK3_l1:")
    loader(A, 1)
    A("; @reset\nK3_stats:")
    stats(A)
    A("; @reset\nK3_comp:")
    compute(A)
    A("K3_done:\ns_endpgm")
    return dict(name="k3_kernel", grid=256, block=512, lds=LDS, vgpr=208, sgpr=48)
```

```python
from asmlib import *
from layout import *

SLOT = 16384
NSLOT = 9
RESO = SLOT * NSLOT
LDS = RESO + 8192
NST = 28
AHEAD = 7


def slot_next(s):
    return [f"s_add_u32 s{s}, s{s}, {SLOT}", f"s_cmp_eq_u32 s{s}, {SLOT*NSLOT}", f"s_cselect_b32 s{s}, 0, s{s}"]


def swz_voff(A, d, stride_shift):
    A(f"""
v_lshrrev_b32 v8, 3, v2
v_and_b32 v9, 7, v2
v_lshrrev_b32 v10, 2, v2
v_and_b32 v10, 4, v10
v_xor_b32 v9, v9, v10
v_lshlrev_b32 v9, 4, v9
v_lshl_add_u32 v{d}, v8, {stride_shift}, v9
""")


def loader(A, which):
    if which == 0:
        A.srd_off(20, 14, WS_HH, 64 * 112 * 1024)
        A(f"v_lshlrev_b32 v16, 4, v2\ns_mul_i32 s32, s16, {2*112*1024}")
    else:
        A.srd(20, "s4", "s5", 1835008)
        swz_voff(A, 16, 10)
        for i in range(1, 4):
            A(f"v_add_u32 v{16+i}, {i*(8192-1024)}, v16")
        A("s_lshl_b32 s32, s17, 7")
    A("s_mov_b32 s34, 0")
    L = f"K4_ld{which}"
    A(f"s_mov_b32 s36, 0\n{L}:")
    A(f"s_cmp_lt_u32 s36, {AHEAD}\ns_cbranch_scc1 {L}_i\ns_waitcnt vmcnt({8*(AHEAD-1)})\ns_barrier\n{L}_i:")
    if which == 0:
        A(f"s_mov_b32 m0, s34\ns_add_u32 s35, s32, {112*1024}")
        for i in range(4):
            A(f"buffer_load_dwordx4 v16, s[20:23], s32 offen offset:{1024*i} lds")
        A("s_add_u32 m0, s34, 4096\ns_add_u32 s32, s32, 4096")
        for i in range(4):
            A(f"buffer_load_dwordx4 v16, s[20:23], s35 offen offset:{1024*i} lds")
    else:
        A(f"s_add_u32 m0, s34, 8192\ns_add_u32 s35, s32, 0x8000")
        for i in range(4):
            A(f"buffer_load_dwordx4 v{16+i}, s[20:23], s32 offen offset:{1024*i} lds")
        A("s_add_u32 m0, s34, 12288\ns_add_u32 s32, s32, 0x10000")
        for i in range(4):
            A(f"buffer_load_dwordx4 v{16+i}, s[20:23], s35 offen offset:{1024*i} lds")
    for l in slot_next(34):
        A(l)
    A(f"s_add_u32 s36, s36, 1\ns_cmp_lt_u32 s36, {NST}\ns_cbranch_scc1 {L}\n; @loop_end {L}")
    for n in range(AHEAD - 1, -1, -1):
        A(f"s_waitcnt vmcnt({8*n})\ns_barrier")
    A.end()


def compute(A):
    X, Y, ACC = 32, 64, 96
    A("s_and_b32 s18, s3, 1\ns_lshr_b32 s19, s3, 1")
    A.srd_off(20, 14, WS_HT, 0x200000)
    swz_voff(A, 16, 12)
    A(f"""
v_add_u32 v17, {32768-1024}, v16
s_lshl_b32 s32, s17, 18
s_lshl_b32 s33, s3, 16
s_add_u32 s32, s32, s33
s_lshl_b32 s33, s16, 7
s_add_u32 s32, s32, s33
s_lshl_b32 s33, s3, 11
s_add_u32 m0, s33, {RESO}
s_nop 0
buffer_load_dwordx4 v16, s[20:23], s32 offen lds
buffer_load_dwordx4 v17, s[20:23], s32 offen offset:1024 lds
""")
    A(f"""
v_lshrrev_b32 v8, 5, v2
v_bfe_u32 v9, v2, 2, 2
v_bfe_u32 v10, v2, 4, 1
v_and_b32 v11, 3, v2
v_lshl_add_u32 v12, v8, 2, v9
v_lshlrev_b32 v12, 7, v12
v_lshl_add_u32 v12, v10, 5, v12
v_lshl_add_u32 v12, v11, 3, v12
v_lshrrev_b32 v9, 1, v9
v_xor_b32 v13, s19, v9
v_lshl_add_u32 v5, v13, 6, v12
v_add_u32 v5, 8192, v5
v_xor_b32 v13, s18, v9
v_lshl_add_u32 v14, v13, 6, v12
s_lshl_b32 s33, s19, 12
s_add_u32 s33, s33, {RESO}
v_add_u32 v14, s33, v14
s_lshl_b32 s33, s18, 12
v_lshl_add_u32 v4, v2, 4, s33
v_mov_b32 v6, v4
v_mov_b32 v7, v5
""")
    for i in range(16):
        A(f"v_mov_b32 v{ACC+i}, 0")

    def reads(S):
        L = []
        for j in range(4):
            L.append(f"ds_read_b128 {vr(S+8*j,4)}, v6 offset:{1024*j}")
            for rd in range(2):
                L.append(f"ds_read_b64_tr_b16 {vr(S+8*j+4+2*rd,2)}, v7 offset:{2048*j+1024*rd}")
        return L

    def stage(S, N, extra):
        for l in slot_next(34):
            A(l)
        A("v_add_u32 v6, s34, v4\nv_add_u32 v7, s34, v5")
        for l in extra:
            A(l)
        A("s_barrier")
        nxt = reads(N)
        for j in range(4):
            A(f"s_waitcnt lgkmcnt(9)")
            A(f"v_mfma_f32_32x32x16_bf16 {vr(ACC,16)}, {vr(S+8*j+4,4)}, {vr(S+8*j,4)}, {vr(ACC,16)}")
            for _ in range(3):
                A(nxt.pop(0))
    A("s_mov_b32 s34, 0\ns_mov_b32 s36, 0\ns_barrier")
    A.stamp(1)
    for r in reads(X):
        A(r)
    A("; @loop_begin K4_c\nK4_c:")
    stage(X, Y, [])
    stage(Y, X, ["s_add_u32 s36, s36, 1", f"s_cmp_lt_u32 s36, {NST//2}", "s_waitcnt vmcnt(0)"])
    A("s_cbranch_scc1 K4_c\n; @loop_end K4_c")
    A.stamp(2)
    A("s_waitcnt lgkmcnt(0)")
    for q in range(4):
        A(f"ds_read_b64_tr_b16 {vr(X+2*q,2)}, v14 offset:{1024*q}")
    A.srd(24, "s6", "s7", 0x200000)
    A("""
v_and_b32 v8, 31, v2
v_lshrrev_b32 v9, 5, v2
v_lshlrev_b32 v8, 10, v8
v_lshl_add_u32 v8, v9, 4, v8
s_lshl_b32 s32, s16, 16
s_lshl_b32 s33, s18, 15
s_add_u32 s32, s32, s33
s_lshl_b32 s33, s17, 7
s_add_u32 s32, s32, s33
s_lshl_b32 s33, s19, 6
s_add_u32 s32, s32, s33
s_mov_b32 s28, 0xffff0000
""")
    for i in range(8):
        A(f"v_cvt_pk_bf16_f32 v{Y+i}, v{ACC+2*i}, v{ACC+2*i+1}")
    for i in range(8):
        A(f"v_lshlrev_b32 v{ACC+2*i}, 16, v{Y+i}\nv_and_b32 v{ACC+2*i+1}, s28, v{Y+i}")
    A("s_waitcnt lgkmcnt(0)")
    for i in range(8):
        A(f"v_lshlrev_b32 v{Y+2*i}, 16, v{X+i}\nv_and_b32 v{Y+2*i+1}, s28, v{X+i}")
    for i in range(8):
        A(f"v_pk_add_f32 {vr(ACC+2*i,2)}, {vr(ACC+2*i,2)}, {vr(Y+2*i,2)}")
    for i in range(8):
        A(f"v_cvt_pk_bf16_f32 v{X+i}, v{ACC+2*i}, v{ACC+2*i+1}")
    for p in range(2):
        A(f"v_permlane32_swap_b32 v{X+4*p}, v{X+4*p+2}")
        A(f"v_permlane32_swap_b32 v{X+4*p+1}, v{X+4*p+3}")
    for p in range(2):
        A(f"buffer_store_dwordx4 {vr(X+4*p,4)}, v8, s[24:27], s32 offen offset:{32*p}")
    A.end()


def k4(A):
    A(f"""
.globl k4_kernel
.p2align 8
.type k4_kernel,@function
k4_kernel:
; @reset
""")
    A.kidx = 3
    A.stamp(0)
    A(f"""
s_cmp_ge_u32 s2, 256
s_cbranch_scc1 K4_done
s_load_dwordx4 s[4:7], s[0:1], 80
s_load_dwordx2 s[14:15], s[0:1], 104
v_lshrrev_b32 v1, 6, v0
v_and_b32 v2, 63, v0
v_readfirstlane_b32 s3, v1
s_and_b32 s16, s2, 3
s_lshl_b32 s16, s16, 3
s_bfe_u32 s18, s2, 0x30003
s_add_u32 s16, s16, s18
s_bfe_u32 s17, s2, 0x10002
s_lshl_b32 s17, s17, 2
s_lshr_b32 s18, s2, 6
s_add_u32 s17, s17, s18
s_waitcnt lgkmcnt(0)
s_cmp_lt_u32 s3, 4
s_cbranch_scc1 K4_comp
s_cmp_eq_u32 s3, 5
s_cbranch_scc1 K4_l1
""")
    loader(A, 0)
    A("; @reset\nK4_l1:")
    loader(A, 1)
    A("; @reset\nK4_comp:")
    compute(A)
    A("K4_done:\ns_endpgm")
    return dict(name="k4_kernel", grid=256, block=384, lds=LDS, vgpr=112, sgpr=48)
```

```python
import os
from asmlib import *
from layout import *

US = 8320
NU = 19
WIN = 7
CSO = NU * US
SPO = CSO + 1024
LDS = SPO + 4096

P = dict(slp=3, slps=10, depth0=4, look=6, bstar=29, bss=12, wring=5, sig=3, sig2=2, npark=8, l16=6, p2lim=2, p3lim=99, npl=10, wlead=0, pd=2)
for kv in os.environ.get("KFP", "").split(","):
    if "=" in kv:
        k_, v_ = kv.split("=")
        P[k_] = int(v_)

B1, B2 = 17, 34
NB = B2 + 28

AH, AW, AH2, AW2, ARES = 4, 7, 18, 21, 24
VH0, VH1, VW, VW2A, VW2B, VHH, VR0, VR1 = 10, 11, 12, 13, 14, 15, 16, 17
ST = 10
ACC = 64
HC = 128
X, Y = 32, 48


class Grp:
    def __init__(self, A):
        self.A = A
        self.q = []

    def vm(self, ins, tag=None):
        self.A(ins)
        self.q.append(tag)

    def wait(self, tags):
        idx = [i for i, t in enumerate(self.q) if t in tags]
        if not idx:
            return
        last = max(idx)
        n = len(self.q) - 1 - last
        assert n <= 63
        self.A(f"s_waitcnt vmcnt({n})")
        self.q = self.q[last + 1:]


def schedule():
    need = {}
    relb = {}
    for s in range(16):
        need[s] = [("h", s), ("W", s)]
        need[B1 + s] = [("W", 16 + s)]
    for i in range(28):
        need[B2 + i] = [("W2", i), ("H", i)]
    need[B2 + 27].append(("R", 0))
    bar_of = {u: b for b, us in need.items() for u in us}
    for u, b in bar_of.items():
        relb[u] = b + 2
    for u in need[15]:
        relb[u] = 16
    relb[("W", 31)] = B2 - 1
    g1 = []
    for s in range(16):
        g1 += [("h", s), ("W", s)]
    g1 += [("W", s) for s in range(16, 32)]
    issue = {b: [] for b in range(-1, NB)}
    slot = {}
    free = list(range(NU))
    rel = {}

    def take(u, b):
        sl = free.pop(0)
        slot[u] = sl
        rel.setdefault(relb[u], []).append(sl)
        issue[b].append(u)
        assert b < bar_of[u], (u, b)
    for _ in range(P["depth0"]):
        take(g1.pop(0), -1)
    w2 = [("W2", i) for i in range(28)] + [("R", 0)]
    hh = [("H", i) for i in range(28)]
    bss = B2 + P["bss"]
    for b in range(NB):
        free += rel.pop(b, [])
        n = 0
        lim = 2 if b < 16 else P["l16"] if b in (16, B2 - 1) else 1 + (b & 1) if b < B2 - 1 else P["p2lim"] if b < bss else P["p3lim"]
        infl = lambda: sum(1 for x in slot if bar_of[x] > b and x[0] in ("h", "W"))
        if b < 13 and infl() + 2 < P["look"]:
            lim = 3
        while free and n < lim:
            parked = sum(1 for x in slot if x[0] in ("W2", "H"))
            if g1 and (b < 15 or infl() < P["wring"] - 2):
                take(g1.pop(0), b)
            elif g1 and parked >= NU - P["wring"]:
                break
            else:
                nw = 29 - len(w2); nh = 28 - len(hh)
                hok = hh and b >= (P["bstar"] if nh < 14 else bss)
                if hok and (nh < nw - (P["wlead"] if nh >= 14 else 0) or not w2):
                    take(hh.pop(0), b)
                elif w2 and nw - nh < (P["npark"] if nh < 14 else P["npl"]):
                    take(w2.pop(0), b)
                elif g1:
                    take(g1.pop(0), b)
                else:
                    break
            n += 1
    assert not g1 and not w2 and not hh
    return slot, issue, need


def dma(G, u, slot):
    A = G.A
    base = slot[u] * US
    kind, i = u
    if kind == "h":
        A(f"s_add_u32 m0, s52, {base}\ns_add_u32 s54, s48, {i*0x20000}")
        G.vm(f"buffer_load_dwordx4 v{VH0}, s[20:23], s54 offen lds", u)
        G.vm(f"buffer_load_dwordx4 v{VH1}, s[20:23], s54 offen offset:1024 lds", u)
    elif kind == "W":
        s, p = i % 16, i // 16
        A(f"s_add_u32 m0, s53, {base}\ns_add_u32 s54, s49, {s*32*3584+p*128}")
        G.vm(f"buffer_load_dwordx4 v{VW}, s[24:27], s54 offen lds", u)
        A(f"s_add_u32 m0, s53, {base+4160}")
        G.vm(f"buffer_load_dwordx4 v{VW}, s[28:31], s54 offen lds", u)
    elif kind == "W2":
        n, p = i % 14, i // 14
        A(f"s_add_u32 m0, s52, {base}\ns_add_u32 s54, s50, {(128*n+64*p)*1024}")
        G.vm(f"buffer_load_dwordx4 v{VW2A}, s[32:35], s54 offen lds", u)
        G.vm(f"buffer_load_dwordx4 v{VW2B}, s[32:35], s54 offen offset:1024 lds", u)
    elif kind == "H":
        n, p = i % 14, i // 14
        A(f"s_add_u32 m0, s52, {base}\ns_add_u32 s54, s51, {(8*n+4*p)*1024}")
        G.vm(f"buffer_load_dwordx4 v{VHH}, s[36:39], s54 offen sc1 lds", u)
        G.vm(f"buffer_load_dwordx4 v{VHH}, s[36:39], s54 offen offset:1024 sc1 lds", u)
    else:
        A(f"s_add_u32 m0, s52, {base}")
        G.vm(f"buffer_load_dwordx4 v{VR0}, s[20:23], s55 offen lds", u)
        G.vm(f"buffer_load_dwordx4 v{VR1}, s[20:23], s55 offen offset:1024 lds", u)


def lds_at(areg, slot, off):
    return f"v{areg + slot // WIN} offset:{(slot % WIN) * US + off}"


def poll(G, dst, voff, soff, label, expect=None, issue=True, check=True, x2=False, slp=4):
    A = G.A
    ld = (f"buffer_load_dwordx2 {vr(dst,2)}" if x2 else f"buffer_load_dword v{dst}") + f", v{voff}, s[40:43], s{soff} offen sc1"
    one, full = ("", "") if x2 else ("s_mov_b64 exec, 1\n", "s_mov_b64 exec, -1\n")
    if issue:
        A(one + ";")
        G.vm(ld, label)
        A(full + ";")
    if check:
        G.wait([label])
        cmpi = f"v_cmp_eq_u32 vcc, 0, v{dst+1}" if x2 else f"v_cmp_ne_u32 vcc, {expect}, v{dst}"
        A(f"{one}{cmpi}\ns_nop 4\ns_cbranch_vccz {label}_ok\n{label}_lp:\ns_sleep {slp}\n{ld}\ns_add_u32 s68, s68, 1\ns_waitcnt vmcnt(0)\n{cmpi}\n"
          f"s_cmp_gt_u32 s68, 0x20000\ns_cbranch_scc1 {label}_ok\ns_nop 3\ns_cbranch_vccnz {label}_lp\n{label}_ok:\n{full};")


def epilogue(G, p):
    A = G.A
    T = 56

    def csreads(j):
        for mat in range(2):
            for hq in range(2):
                A(f"ds_read_b128 {vr(X+8*mat+4*hq,4)}, v27 offset:{mat*512+(64*p+16*j+8*hq)*4}")
    csreads(0)
    if p == 0:
        poll(G, ST, 26, 56, "KF_st", issue=False, x2=True)
        A(f"v_rcp_f32 v{ST+2}, v{ST+1}\nv_mul_f32 v{ST+3}, v{ST+1}, v{ST+1}\nv_mul_f32 v{ST+2}, 0xbfb8aa3b, v{ST+2}")
    else:
        A("s_add_u32 s57, s57, 4096\ns_add_u32 s58, s58, 256")
    for j in range(4):
        a = ACC + 16 * j
        A("s_waitcnt lgkmcnt(0)")
        for q in range(8):
            A(f"v_pk_fma_f32 {vr(a+2*q,2)}, {vr(X+2*q,2)}, {vr(ST,2)}, {vr(a+2*q,2)} op_sel_hi:[1,0,1] neg_lo:[1,0,0] neg_hi:[1,0,0]")
        if j < 3:
            csreads(j + 1)
        for q in range(4):
            A(f"v_pk_mul_f32 {vr(T+2*q,2)}, {vr(a+2*q,2)}, {vr(ST+2,2)} op_sel_hi:[1,0]")
        for q in range(8):
            A(f"v_exp_f32 v{T+q}, v{T+q}")
        for q in range(4):
            A(f"v_pk_mul_f32 {vr(a+2*q,2)}, {vr(a+2*q,2)}, {vr(a+8+2*q,2)}")
        for q in range(4):
            A(f"v_pk_fma_f32 {vr(T+2*q,2)}, {vr(T+2*q,2)}, {vr(ST+2,2)}, {vr(ST+2,2)} op_sel:[0,1,1] op_sel_hi:[1,1,1]")
        for q in range(8):
            A(f"v_rcp_f32 v{T+q}, v{T+q}")
        for q in range(4):
            A(f"v_pk_mul_f32 {vr(a+2*q,2)}, {vr(a+2*q,2)}, {vr(T+2*q,2)}")
        o = 48 + 4 * (j & 1)
        for q in range(4):
            A(f"v_cvt_pk_bf16_f32 v{o+q}, v{a+2*q}, v{a+2*q+1}")
        G.vm(f"buffer_store_dwordx4 {vr(o,4)}, v3, s[36:39], s57 offen offset:{1024*j} {os.environ.get('STF', 'sc1')}", "st")


def signal(G):
    G.wait(["st"])
    G.A("s_mov_b64 exec, 1")
    G.vm("buffer_atomic_add v25, v28, s[40:43], s58 offen sc1")
    G.A("s_mov_b64 exec, -1")


def g1_reads(S, slot, p, s, ks):
    L = []
    if p == 0:
        for rd in range(2):
            L.append(f"ds_read_b64_tr_b16 {vr(HC+8*s+4*ks+2*rd,2)}, {lds_at(AH, slot[('h', s)], ks*4096+rd*1024)}")
    for j in range(4):
        for rd in range(2):
            L.append(f"ds_read_b64_tr_b16 {vr(S+4*j+2*rd,2)}, {lds_at(AW, slot[('W', 16*p+s)], ks*1024+rd*256+j*32)}")
    return L


def g1_kstep(A, S, hreg, nxt, first):
    n = len(nxt)
    per = [3, 2, 3, 2] if n == 10 else [2, 2, 2, 2] if n == 8 else [0] * 4
    issued = 0
    for j in range(4):
        if j == 0:
            A("s_waitcnt lgkmcnt(4)")
        if j == 2:
            A(f"s_waitcnt lgkmcnt({issued})")
            if n == 0:
                A("s_barrier")
        c = "0" if first else vr(ACC + 16 * j, 16)
        A(f"v_mfma_f32_32x32x16_bf16 {vr(ACC+16*j,16)}, {vr(S+4*j,4)}, {vr(hreg,4)}, {c}")
        for _ in range(per[j]):
            A(nxt.pop(0)); issued += 1


def g1_phase(G, slot, p, hooks):
    A = G.A
    A("s_barrier")
    for r in g1_reads(X, slot, p, 0, 0):
        A(r)
    for s in range(16):
        g1_kstep(A, X, HC + 8 * s, g1_reads(Y, slot, p, s, 1), s == 0)
        for h in hooks.get(s + 1, []):
            h()
        if s < 15:
            A("s_barrier")
        g1_kstep(A, Y, HC + 8 * s + 4, g1_reads(X, slot, p, s + 1, 0) if s < 15 else [], False)


def loader_ticks(G, slot, issue, need, b_from, name):
    A = G.A
    first_h = {}
    for b in range(-1, NB):
        for u in issue[b]:
            if u in (("H", 0), ("H", 14)):
                first_h[u[1] // 14] = b
    for b in range(b_from, NB - 1):
        for ph in range(2):
            if b == first_h[ph] - P["pd"]:
                poll(G, 29, 28, 59 + ph, f"KF_p{name}{ph}", 28, check=False)
        for u in issue[b]:
            if u in (("H", 0), ("H", 14)):
                ph = u[1] // 14
                A.stamp(2 + 2 * ph)
                poll(G, 29, 28, 59 + ph, f"KF_p{name}{ph}", 28, issue=False, slp=(P["slps"] if name == "S" else P["slp"]))
                A.stamp(3 + 2 * ph)
            dma(G, u, slot)
        G.wait(need.get(b + 1, [])); A("s_barrier")


def p2_compute(G, slot):
    A = G.A
    X2, Y2, AC2 = 128, 160, 192

    def reads(S, i):
        L = []
        for j in range(4):
            L.append(f"ds_read_b128 {vr(S+8*j,4)}, {lds_at(AH2, slot[('H', i)], 1024*j)}")
            for rd in range(2):
                L.append(f"ds_read_b64_tr_b16 {vr(S+8*j+4+2*rd,2)}, {lds_at(AW2, slot[('W2', i)], 2048*j+1024*rd)}")
        return L
    A("s_barrier")
    for r in reads(X2, 0):
        A(r)
    for i in range(28):
        S, N = (X2, Y2) if i % 2 == 0 else (Y2, X2)
        if i == P["sig2"]:
            A("s_cmp_ge_u32 s66, 28\ns_cbranch_scc1 KF_nosig")
            signal(G)
            A("KF_nosig:")
        if i < 27:
            A("s_barrier")
            nxt = reads(N, i + 1)
        else:
            nxt = [f"ds_read_b64_tr_b16 {vr(N+2*q,2)}, v{ARES} offset:{1024*q}" for q in range(4)]
        for j in range(4):
            A(f"s_waitcnt lgkmcnt({9 if i < 27 else 9 - 2 * j})")
            c = "0" if i == 0 and j == 0 else vr(AC2, 16)
            A(f"v_mfma_f32_32x32x16_bf16 {vr(AC2,16)}, {vr(S+8*j+4,4)}, {vr(S+8*j,4)}, {c}")
            for _ in range(3 if i < 27 else 1):
                A(nxt.pop(0))
    A.stamp(5)
    R, T = X2, Y2
    A("""
v_and_b32 v30, 31, v2
v_lshrrev_b32 v31, 5, v2
v_lshlrev_b32 v30, 10, v30
v_lshl_add_u32 v30, v31, 4, v30
s_and_b32 s61, s12, 1
s_lshl_b32 s61, s61, 15
s_lshl_b32 s54, s18, 16
s_add_u32 s54, s54, s61
s_add_u32 s54, s54, s50
s_lshr_b32 s61, s12, 1
s_lshl_b32 s61, s61, 6
s_add_u32 s54, s54, s61
s_mov_b32 s61, 0xffff0000
s_waitcnt lgkmcnt(0)
""")
    for i in range(8):
        A(f"v_lshlrev_b32 v{T+2*i}, 16, v{R+i}\nv_and_b32 v{T+2*i+1}, s61, v{R+i}")
    for i in range(8):
        A(f"v_cvt_pk_bf16_f32 v{R+i}, v{AC2+2*i}, v{AC2+2*i+1}")
    for i in range(8):
        A(f"v_lshlrev_b32 v{AC2+2*i}, 16, v{R+i}\nv_and_b32 v{AC2+2*i+1}, s61, v{R+i}")
    for i in range(8):
        A(f"v_pk_add_f32 {vr(AC2+2*i,2)}, {vr(AC2+2*i,2)}, {vr(T+2*i,2)}")
    for i in range(8):
        A(f"v_cvt_pk_bf16_f32 v{R+i}, v{AC2+2*i}, v{AC2+2*i+1}")
    for p in range(2):
        A(f"v_permlane32_swap_b32 v{R+4*p}, v{R+4*p+2}")
        A(f"v_permlane32_swap_b32 v{R+4*p+1}, v{R+4*p+3}")
    for p in range(2):
        A(f"buffer_store_dwordx4 {vr(R+4*p,4)}, v30, s[44:47], s54 offen offset:{32*p}")
    A.end()


def setup_g1_dma(A):
    A(f"""
v_lshrrev_b32 v30, 4, v2
v_and_b32 v31, 15, v2
v_lshlrev_b32 v29, 2, v30
v_xor_b32 v31, v31, v29
v_lshlrev_b32 v31, 4, v31
v_lshl_add_u32 v{VH0}, v30, 12, v31
s_lshl_b32 s54, s12, 15
v_add_u32 v{VH0}, s54, v{VH0}
v_add_u32 v{VH1}, {16384-1024}, v{VH0}
v_bfe_u32 v31, v2, 3, 1
v_add_u32 v31, v29, v31
s_lshr_b32 s54, s12, 1
s_lshl_b32 s54, s54, 4
s_and_b32 s61, s12, 1
s_lshl_b32 s62, s61, 1
s_add_u32 s54, s54, s62
v_add_u32 v31, s54, v31
v_mul_u32_u24 v31, 3584, v31
v_and_b32 v30, 7, v2
v_lshl_add_u32 v{VW}, v30, 4, v31
s_mul_i32 s53, s61, 2080
s_lshr_b32 s54, s12, 1
s_lshl_b32 s54, s54, 10
s_add_u32 s53, s53, s54
""")


def setup_g2_ids(A):
    A(f"""
s_and_b32 s61, s2, 3
s_bfe_u32 s62, s2, 0x10002
s_lshl_b32 s18, s61, 3
s_and_b32 s54, s66, 7
s_add_u32 s18, s18, s54
s_lshl_b32 s19, s62, 2
s_lshr_b32 s54, s66, 3
s_add_u32 s19, s19, s54
s_lshl_b32 s50, s19, 7
s_mov_b32 s68, 0
""")
    A.srd_off(36, 64, WS_HH, 64 * 112 * 1024)
    A.srd_off(40, 64, WS_CS, 0x100000)


def setup_loader_rest(A):
    A.srd(32, "s8", "s9", 1835008)
    A(f"""
s_mul_i32 s51, s18, {2*112*1024}
v_lshrrev_b32 v30, 3, v2
v_and_b32 v31, 7, v2
v_lshrrev_b32 v29, 2, v2
v_and_b32 v29, 4, v29
v_xor_b32 v31, v31, v29
v_lshlrev_b32 v31, 4, v31
s_lshl_b32 s54, s12, 4
v_add_u32 v30, s54, v30
v_lshl_add_u32 v{VW2A}, v30, 10, v31
v_add_u32 v{VW2B}, {8192-1024}, v{VW2A}
v_lshl_add_u32 v{VR0}, v30, 12, v31
v_add_u32 v{VR1}, {32768-1024}, v{VR0}
s_lshr_b32 s62, s12, 1
s_and_b32 s61, s12, 1
s_mul_i32 s54, s62, {112*1024}
s_lshl_b32 s63, s61, 11
s_add_u32 s54, s54, s63
v_lshl_add_u32 v{VHH}, v2, 4, s54
s_lshl_b32 s55, s19, 18
s_lshl_b32 s54, s18, 7
s_add_u32 s55, s55, s54
v_mov_b32 v28, 0
s_lshl_b32 s59, s18, 9
s_add_u32 s59, s59, {MI_CN}
s_add_u32 s60, s59, 256
""")


def setup_compute(A, slot):
    A.srd(44, "s10", "s11", 0x200000)
    A(f"""
v_lshlrev_b32 v3, 4, v2
s_lshr_b32 s62, s12, 1
s_and_b32 s61, s12, 1
v_lshrrev_b32 v25, 5, v2
v_bfe_u32 v26, v2, 2, 2
v_bfe_u32 v27, v2, 4, 1
v_and_b32 v28, 3, v2
v_lshl_add_u32 v29, v25, 3, v26
v_xor_b32 v30, s12, v26
v_lshlrev_b32 v{AH}, 8, v29
v_lshl_add_u32 v{AH}, v30, 6, v{AH}
v_lshl_add_u32 v{AH}, v27, 5, v{AH}
v_lshl_add_u32 v{AH}, v28, 3, v{AH}
v_mul_u32_u24 v{AW}, 4160, v27
v_lshrrev_b32 v30, 1, v26
v_mul_u32_u24 v31, 2080, v30
v_add_u32 v{AW}, v{AW}, v31
v_and_b32 v31, 1, v26
v_lshl_add_u32 v{AW}, v31, 7, v{AW}
v_lshl_add_u32 v{AW}, v25, 9, v{AW}
v_lshl_add_u32 v{AW}, v28, 3, v{AW}
v_lshl_add_u32 v29, v25, 2, v26
v_lshlrev_b32 v29, 7, v29
v_lshl_add_u32 v29, v27, 5, v29
v_lshl_add_u32 v29, v28, 3, v29
v_xor_b32 v31, s62, v30
v_lshl_add_u32 v{AW2}, v31, 6, v29
v_xor_b32 v31, s61, v30
v_lshl_add_u32 v{ARES}, v31, 6, v29
s_lshl_b32 s54, s62, 12
s_add_u32 s54, s54, {slot[('R', 0)] * US}
v_add_u32 v{ARES}, s54, v{ARES}
s_lshl_b32 s54, s61, 12
v_add_u32 v{AH2}, s54, v3
""")
    for a in (AH, AW, AH2, AW2):
        A(f"v_add_u32 v{a+1}, {WIN*US}, v{a}\nv_add_u32 v{a+2}, {2*WIN*US}, v{a}")
    A(f"""
v_lshlrev_b32 v27, 4, v25
v_add_u32 v27, {CSO}, v27
v_and_b32 v26, 31, v2
v_lshlrev_b32 v26, 3, v26
v_mov_b32 v25, 1
v_mov_b32 v28, 0
s_lshl_b32 s54, s16, 2
s_add_u32 s54, s54, s12
s_lshl_b32 s56, s54, 8
s_add_u32 s56, s56, {MI_ST}
s_mul_i32 s57, s54, 112
s_lshl_b32 s63, s17, 3
s_add_u32 s57, s57, s63
s_lshl_b32 s57, s57, 10
s_andn2_b32 s58, s54, 1
s_lshl_b32 s58, s58, 8
s_add_u32 s58, s58, {MI_CN}
""")


def stats_wg(A):
    A(f"""
s_and_b32 s14, s2, 3
s_lshl_b32 s14, s14, 3
s_and_b32 s54, s2, 4
s_add_u32 s14, s14, s54
s_and_b32 s54, s66, 3
s_add_u32 s14, s14, s54
v_lshrrev_b32 v30, 3, v2
v_and_b32 v31, 7, v2
v_lshlrev_b32 v31, 4, v31
v_lshl_add_u32 v30, v30, 12, v31
s_lshl_b32 s54, s3, 18
s_lshl_b32 s61, s14, 7
s_add_u32 s54, s54, s61
buffer_load_dwordx4 v[96:99], v31, s[20:23], s61 offen
""")
    for i in range(8):
        A(f"buffer_load_dwordx4 {vr(64+4*i,4)}, v30, s[20:23], s54 offen")
        if i < 7:
            A("s_add_u32 s54, s54, 0x8000")
    A("v_lshlrev_b32 v29, 1, v2\nbuffer_load_ushort v100, v29, s[20:23], s61 offen")
    setup_g2_ids(A)
    A("s_mov_b32 s61, 0xffff0000\ns_waitcnt vmcnt(8)")
    PV, S, Q, T = 104, 112, 120, 128
    for i in range(4):
        A(f"v_lshlrev_b32 v{PV+2*i}, 16, v{96+i}\nv_and_b32 v{PV+2*i+1}, s61, v{96+i}")
    for r in range(8):
        if r:
            A(f"s_waitcnt vmcnt({8-r})")
        for i in range(4):
            A(f"v_lshlrev_b32 v{T+2*i}, 16, v{64+4*r+i}\nv_and_b32 v{T+2*i+1}, s61, v{64+4*r+i}")
        for i in range(4):
            d = S if r == 0 else T
            A(f"v_pk_add_f32 {vr(d+2*i,2)}, {vr(T+2*i,2)}, {vr(PV+2*i,2)} neg_lo:[0,1] neg_hi:[0,1]")
        for i in range(4):
            if r == 0:
                A(f"v_pk_mul_f32 {vr(Q+2*i,2)}, {vr(S+2*i,2)}, {vr(S+2*i,2)}")
            else:
                A(f"v_pk_add_f32 {vr(S+2*i,2)}, {vr(S+2*i,2)}, {vr(T+2*i,2)}")
                A(f"v_pk_fma_f32 {vr(Q+2*i,2)}, {vr(T+2*i,2)}, {vr(T+2*i,2)}, {vr(Q+2*i,2)}")
    for b in (S, Q):
        for e in range(4):
            A(f"v_permlane32_swap_b32 v{b+e}, v{b+e+4}")
    for b in (S, Q):
        for e in range(4):
            A(f"v_add_f32 v{b+e}, v{b+e}, v{b+e+4}")
    for b in (S, Q):
        for e in range(2):
            A(f"v_permlane16_swap_b32 v{b+e}, v{b+e+2}")
    A(f"""
v_add_f32 v{T}, v{S}, v{S+2}
v_add_f32 v{T+1}, v{Q}, v{Q+2}
v_add_f32 v{T+2}, v{S+1}, v{S+3}
v_add_f32 v{T+3}, v{Q+1}, v{Q+3}
""")
    for e in range(4):
        A(f"v_add_f32_dpp v{T+e}, v{T+e}, v{T+e} row_ror:8 row_mask:0xf bank_mask:0xf")
    A(f"""
v_lshlrev_b32 v31, 2, v31
v_lshrrev_b32 v30, 4, v2
v_lshl_add_u32 v31, v30, 4, v31
s_lshl_b32 s54, s3, 9
s_add_u32 s54, s54, {SPO}
v_add_u32 v31, s54, v31
ds_write_b128 v31, {vr(T,4)}
v_lshlrev_b32 v30, 3, v2
v_add_u32 v31, {SPO}, v30
s_waitcnt lgkmcnt(0)
s_barrier
s_cmp_lg_u32 s3, 0
s_cbranch_scc1 KF_sdone
""")
    for w in range(8):
        A(f"ds_read_b64 {vr(64+2*w,2)}, v31 offset:{512*w}")
    A(f"""
s_lshl_b32 s54, s14, 9
s_add_u32 s54, s54, {MI_ST}
s_mov_b32 s62, 0x3b000000
s_waitcnt vmcnt(0) lgkmcnt(0)
v_pk_add_f32 v[64:65], v[64:65], v[66:67]
v_pk_add_f32 v[68:69], v[68:69], v[70:71]
v_pk_add_f32 v[72:73], v[72:73], v[74:75]
v_pk_add_f32 v[76:77], v[76:77], v[78:79]
v_pk_add_f32 v[64:65], v[64:65], v[68:69]
v_pk_add_f32 v[72:73], v[72:73], v[76:77]
v_lshlrev_b32 v100, 16, v100
v_pk_add_f32 v[64:65], v[64:65], v[72:73]
v_mul_f32 v64, s62, v64
v_mul_f32 v65, s62, v65
v_fma_f32 v65, -v64, v64, v65
v_add_f32 v64, v64, v100
v_max_f32 v65, 0, v65
v_cvt_pk_bf16_f32 v66, v64, v65
v_lshlrev_b32 v64, 16, v66
v_and_b32 v65, s61, v66
v_add_f32 v65, 0x3727c5ac, v65
v_cvt_pk_bf16_f32 v65, v65, v65
v_lshlrev_b32 v65, 16, v65
v_sqrt_f32 v65, v65
v_cvt_pk_bf16_f32 v65, v65, v65
v_lshlrev_b32 v65, 16, v65
buffer_store_dwordx2 v[64:65], v30, s[40:43], s54 offen sc1
KF_sdone:
s_waitcnt vmcnt(0)
""")


def kf(A, kidx=2):
    slot, issue, need = schedule()
    if os.environ.get("KFV"):
        for b in range(-1, NB):
            print(b, [(u, slot[u]) for u in issue[b]])
    A("""
.globl kf_kernel
.p2align 8
.type kf_kernel,@function
kf_kernel:
; @reset
""")
    A.kidx = kidx
    A.stamp(0)
    A(f"""
s_cmp_ge_u32 s2, 256
s_cbranch_scc1 KF_done
s_load_dwordx8 s[4:11], s[0:1], 64
s_load_dwordx2 s[64:65], s[0:1], 104
v_lshrrev_b32 v1, 6, v0
v_and_b32 v2, 63, v0
v_readfirstlane_b32 s3, v1
s_and_b32 s61, s2, 3
s_bfe_u32 s62, s2, 0x10002
s_lshr_b32 s66, s2, 3
s_and_b32 s12, s3, 3
s_lshl_b32 s16, s61, 2
s_and_b32 s54, s66, 3
s_add_u32 s16, s16, s54
s_mul_i32 s17, s62, 7
s_lshr_b32 s54, s66, 2
s_add_u32 s17, s17, s54
s_lshl_b32 s52, s12, 11
s_cmp_ge_u32 s66, 28
s_cbranch_scc1 KF_S
s_cmp_lt_u32 s3, 4
s_cbranch_scc1 KF_C
s_lshl_b32 s48, s16, 8
s_lshl_b32 s49, s17, 8
""")
    setup_g1_dma(A)
    A("s_mov_b32 s22, 0x200000\ns_mov_b32 s23, 0x20000\ns_mov_b32 s26, 1835008\ns_mov_b32 s27, 0x20000\ns_mov_b32 s30, 1835008\ns_mov_b32 s31, 0x20000")
    A(f"s_waitcnt lgkmcnt(0)\ns_add_u32 s20, s64, {WS_HT}\ns_addc_u32 s21, s65, 0\ns_mov_b32 s24, s4\ns_mov_b32 s25, s5\ns_mov_b32 s28, s6\ns_mov_b32 s29, s7")
    GL = Grp(A)
    for u in issue[-1]:
        dma(GL, u, slot)
    setup_g2_ids(A)
    setup_loader_rest(A)
    A.stamp(1)
    GL.wait(need[0]); A("s_barrier")
    loader_ticks(GL, slot, issue, need, 0, "L")
    A.end()
    A("; @reset\nKF_C:")
    GC = Grp(A)
    A("s_waitcnt lgkmcnt(0)")
    setup_g2_ids(A)
    A(f"""
s_lshr_b32 s61, s12, 1
s_mul_i32 s54, s61, 7168
s_lshl_b32 s61, s17, 9
s_add_u32 s54, s54, s61
s_and_b32 s61, s12, 1
s_lshl_b32 s61, s61, 8
s_add_u32 s54, s54, s61
v_lshlrev_b32 v30, 2, v2
""")
    CB = 248
    for r in range(8):
        GC.vm(f"buffer_load_dword v{CB+r}, v30, s[40:43], s54 offen", "cs")
        if r < 7:
            A("s_add_u32 s54, s54, 14336")
    setup_compute(A, slot)
    A(f"v_lshlrev_b32 v30, 2, v0\nv_add_u32 v30, {CSO}, v30")

    def cs1():
        GC.wait(["cs"])
        for r in range(0, 8, 2):
            A(f"v_add_f32 v{CB+r}, v{CB+r}, v{CB+r+1}")

    def cs2():
        A(f"v_add_f32 v{CB}, v{CB}, v{CB+2}\nv_add_f32 v{CB+4}, v{CB+4}, v{CB+6}\nv_add_f32 v{CB}, v{CB}, v{CB+4}\nds_write_b32 v30, v{CB}")
    A.stamp(1)
    g1_phase(GC, slot, 0, {8: [cs1], 9: [cs2], 14: [lambda: poll(GC, ST, 26, 56, "KF_st", check=False, x2=True)]})
    A.stamp(2)
    epilogue(GC, 0)
    A.stamp(3)
    if P.get("dbg1"):
        signal(GC)
        A.stamp(1)
        g1_phase(GC, slot, 1, {})
    else:
        g1_phase(GC, slot, 1, {P["sig"]: [lambda: signal(GC)]})
    A.stamp(4)
    epilogue(GC, 1)
    A("KF_P2:")
    p2_compute(GC, slot)
    A("; @reset\nKF_S:\ns_waitcnt lgkmcnt(0)")
    A.srd_off(20, 64, WS_HT, 0x200000)
    stats_wg(A)
    A.stamp(1)
    A("s_cmp_lt_u32 s3, 4\ns_cbranch_scc0 KF_SL")
    setup_compute(A, slot)
    A("s_branch KF_P2")
    A("KF_SL:")
    setup_loader_rest(A)
    GS = Grp(A)
    pre = [u for b in range(-1, B2) for u in issue[b] if u[0] in ("W2", "H", "R")]
    for u in pre:
        if u[0] != "H":
            dma(GS, u, slot)
    poll(GS, 29, 28, 59, "KF_ps", 28, slp=P["slps"])
    for u in pre:
        if u[0] == "H":
            dma(GS, u, slot)
    GS.wait(need[B2]); A("s_barrier")
    loader_ticks(GS, slot, issue, need, B2, "S")
    A.end()
    A("KF_done:\ns_endpgm")
    return dict(name="kf_kernel", grid=256, block=512, lds=LDS, vgpr=256, sgpr=70)
```

```python
import sys
from asmlib import *
import k1, k2, k3, k4
import kf2 as kf
NAME = "sequential_preLN__ssm_conv_s4d__glu_gated_swiglu__prompt"
ref = open(f"cdna_kernels/{NAME}.s.ref").read().split("\n")
head = [l for l in ref if l.startswith(";") and "@launch" not in l and "Override" not in l and "grid=ceil" not in l]
A = Asm()
ks = [k1.k1(A), k2.k2(A), kf.kf(A)]
import os, re
EXP = os.environ.get("EXP", "").split(",")
def between(lines, a, b, f):
    out = []; on = False
    for l in lines:
        if a in l: on = True
        if b in l: on = False
        if on:
            l = f(l)
            if l is None: continue
        out.append(l)
    return out
L = A.lines
if "nostats" in EXP:
    L = between(L, "@loop_begin K3_st", "@loop_end K3_st", lambda l: None if re.search(r"v_pk_|v_lshlrev|v_and|ds_read", l) else l)
if "nodma" in EXP:
    for w in ("K3_ld0", "K3_ld1", "K4_ld0", "K4_ld1"):
        L = between(L, "@loop_begin " + w, "@loop_end " + w, lambda l: None if "buffer_load" in l else l)
if "nowdma" in EXP:
    for w in ("K3_ld0", "K3_ld1"):
        L = between(L, "@loop_begin " + w, "@loop_end " + w, lambda l: None if "buffer_load" in l and "s[20:23]" not in l else l)
    L = between(L, "@loop_begin K4_ld1", "@loop_end K4_ld1", lambda l: None if "buffer_load" in l else l)
if "nohdma" in EXP:
    for w in ("K3_ld0", "K4_ld0"):
        L = between(L, "@loop_begin " + w, "@loop_end " + w, lambda l: None if "buffer_load" in l and "s[20:23]" in l else l)
if "nomfma" in EXP:
    for w in ("K3_c", "K4_c"):
        L = between(L, "@loop_begin " + w, "@loop_end " + w, lambda l: None if "v_mfma" in l else l)
if "noread" in EXP:
    for w in ("K3_c", "K4_c"):
        L = between(L, "@loop_begin " + w, "@loop_end " + w, lambda l: None if "ds_read" in l else l)
if "kf_nodma" in EXP:
    L = between(L, "kf_kernel:", "KF_done:", lambda l: None if re.search(r"buffer_load.* lds", l) else re.sub(r"vmcnt\(\d+\)", "vmcnt(0)", l))
if "kf_nocomp" in EXP:
    L = between(L, "kf_kernel:", "KF_S:", lambda l: None if re.search(r"v_mfma|ds_read_b64_tr|v_exp|v_rcp|v_fma|v_mul_f32", l) else l)
if "kf_noepi" in EXP:
    L = between(L, "kf_kernel:", "KF_S:", lambda l: None if re.search(r"v_exp|v_rcp|v_fma|v_mul_f32", l) else l)
body = fix_hazards(L)
out = head + [f"; @launch kernel={k['name']} grid=({k['grid']},1,1) block=({k['block']},1,1) lds={k['lds']}" for k in ks]
out += ['.amdgcn_target "amdgcn-amd-amdhsa--gfx950"', ".text"] + body + ['.section .rodata,"a"']
out += [kernel_desc(k['name'], k['vgpr'], k['sgpr']) for k in ks]
path = sys.argv[1] if len(sys.argv) > 1 else f"cdna_kernels/{NAME}.s"
open(path, "w").write("\n".join(out) + "\n")
print("wrote", path, len(body), "lines")
```

```python
import re

TRANS = ("v_exp_f32", "v_log_f32", "v_rcp_f32", "v_rsq_f32", "v_sqrt_f32", "v_sin_f32", "v_cos_f32")
REG_RE = re.compile(r"\b([vas])\[(\d+):(\d+)\]|\b([vas])(\d+)\b|\b(vcc|exec|m0)\b")


def regs_of(tok):
    out = []
    for m in REG_RE.finditer(tok):
        if m.group(1):
            out += [(m.group(1), i) for i in range(int(m.group(2)), int(m.group(3)) + 1)]
        elif m.group(4):
            out.append((m.group(4), int(m.group(5))))
        else:
            out.append((m.group(6), 0))
    return out


def split_ops(rest):
    ops, depth, cur = [], 0, ""
    for ch in rest:
        if ch in "[(":
            depth += 1
        if ch in "])":
            depth -= 1
        if ch == "," and depth == 0:
            ops.append(cur.strip()); cur = ""
        else:
            cur += ch
    if cur.strip():
        ops.append(cur.strip())
    return ops


class Ins:
    def __init__(self, line):
        self.line = line
        code = line.split(";")[0].strip()
        self.is_ins = bool(code) and not code.endswith(":") and not code.startswith(".")
        self.is_label = code.endswith(":")
        if not self.is_ins:
            return
        parts = code.split(None, 1)
        op = parts[0]
        self.op = op
        rest = parts[1] if len(parts) > 1 else ""
        ops = split_ops(rest)
        self.mods = rest
        base = re.sub(r"_(e32|e64|dpp|sdwa)$", "", op)
        self.base = base
        R = [regs_of(o.split(" ")[0] if not o.startswith("abs(") else o) for o in ops]
        self.mfma = op.startswith("v_mfma")
        self.valu = op.startswith("v_") and not self.mfma
        self.trans = base in TRANS
        self.ds = op.startswith("ds_")
        self.vmem = op.startswith("buffer_") or op.startswith("global_")
        self.salu = op.startswith("s_")
        self.dpp = op.endswith("_dpp") or "quad_perm" in rest or "row_" in rest or "wave_sh" in rest
        self.perml = "permlane" in op
        self.rdlane = base in ("v_readfirstlane_b32", "v_readlane_b32")
        self.dst, self.src = [], []
        self.srcC = []
        self.states = 1
        self.store_data = []
        flat = lambda L: [r for x in L for r in x]
        if self.mfma:
            self.dst = R[0]; self.src = R[1] + R[2]; self.srcC = R[3] if len(R) > 3 else []
            self.passes = 8 if "32x32x16" in op else 4
            assert "32x32x16" in op or "16x16x32" in op, op
        elif self.valu:
            if self.perml:
                self.dst = R[0] + R[1]; self.src = R[0] + R[1]
            else:
                self.dst = R[0]; self.src = flat(R[1:])
                if base in ("v_fmac_f32", "v_dot2c_f32_bf16", "v_pk_fmac_f16") or self.dpp:
                    self.src += R[0]
                assert "_co_" not in op, op
        elif self.ds:
            if op.startswith("ds_read") or op.startswith("ds_bpermute") or op.startswith("ds_swizzle"):
                self.dst = R[0]; self.src = flat(R[1:])
                if "d16" in op:
                    self.src += R[0]
            else:
                self.src = flat(R)
        elif self.vmem:
            islds = re.search(r"\blds\b", rest) is not None
            if op in ("buffer_inv", "buffer_wbl2"):
                pass
            elif "load" in op and not islds:
                self.dst = R[0]; self.src = flat(R[1:])
            elif "atomic" in op and "sc0" in rest and op.startswith("buffer"):
                self.dst = R[0]; self.src = flat(R)
            else:
                self.src = flat(R)
                if islds:
                    self.src.append(("m0", 0))
                if "store" in op and ("x4" in op or "x3" in op):
                    self.store_data = R[0] if op.startswith("buffer") else R[1]
            self.islds = islds
        elif self.salu:
            if op == "s_nop":
                self.states = int(ops[0], 0) + 1
            elif op.startswith("s_cmp") or op.startswith("s_cbranch") or op in (
                    "s_waitcnt", "s_barrier", "s_branch", "s_setprio", "s_endpgm", "s_sleep", "s_bitcmp1_b32", "s_bitcmp0_b32"):
                self.src = flat(R)
            else:
                self.dst = R[0]; self.src = flat(R[1:])
                if "saveexec" in op:
                    self.dst = self.dst + [("exec", 0)]
        else:
            raise ValueError("unknown op " + line)


def need(p, c):
    n = 0
    pd = set(p.dst)
    isv = lambda r: r[0] in "va" and r[0] not in ("vcc",)
    if p.valu:
        vd = {r for r in pd if r[0] in ("v", "a")}
        sd = {r for r in pd if r[0] in ("s", "vcc")}
        if c.mfma and vd & set(c.src + c.srcC):
            n = max(n, 2)
        if c.valu:
            cs = set(c.src)
            if p.trans and not c.trans and vd & cs:
                n = max(n, 1)
            if p.trans and c.trans and vd & cs:
                n = max(n, 1)
            if (c.dpp or c.perml) and vd & cs:
                n = max(n, 2)
            if c.rdlane and vd & cs:
                n = max(n, 1)
            if sd & cs:
                n = max(n, 4 if c.rdlane else 2)
            if "sdwa" in p.op and vd & (cs | set(c.dst)):
                n = max(n, 1)
        if c.vmem and sd & set(c.src):
            n = max(n, 5)
        if c.salu and sd & set(c.src):
            n = max(n, 1)
    if p.mfma:
        big = 12 if p.passes == 8 else 8
        if c.mfma:
            if pd & set(c.src):
                n = max(n, big)
            if pd & set(c.srcC):
                if not (c.srcC == p.dst and c.passes == p.passes):
                    n = max(n, big - 2)
            elif pd & set(c.dst):
                n = max(n, big)
        elif c.valu or c.ds or c.vmem:
            if pd & (set(c.src) | set(c.dst)):
                n = max(n, big)
        if c.valu and set(p.srcC) & set(c.dst):
            n = max(n, 7 if p.passes == 8 else 3)
    if p.salu and ("m0", 0) in pd and c.vmem and ("m0", 0) in c.src:
        n = max(n, 1)
    if p.vmem and p.store_data and set(p.store_data) & set(c.dst):
        n = max(n, 2 if c.valu else 1)
    return n


def fix_hazards(lines, verbose=False):
    out = []
    hist = []
    loops = {}
    for line in lines:
        for sub in line.split("\n"):
            m = re.match(r"\s*; @loop_begin (\w+)", sub)
            if m:
                loops[m.group(1)] = len(out)
                out.append(sub); continue
            m = re.match(r"\s*; @loop_end (\w+)", sub)
            if m:
                h2 = list(hist)
                cnt = 0
                for l2 in out[loops[m.group(1)]:]:
                    i2 = Ins(l2)
                    if not i2.is_ins:
                        continue
                    dist = 0
                    for p in reversed(h2[-24:]):
                        if need(p, i2) > dist:
                            raise ValueError(f"back-edge hazard: {p.line} -> {i2.line}")
                        dist += p.states
                    h2.append(i2)
                    cnt += 1
                    if cnt > 24:
                        break
                out.append(sub); continue
            if re.match(r"\s*; @reset", sub):
                hist = []
                out.append(sub); continue
            ins = Ins(sub)
            if not ins.is_ins:
                out.append(sub); continue
            dist = 0
            pad = 0
            for p in reversed(hist[-24:]):
                r = need(p, ins)
                if r > dist:
                    pad = max(pad, r - dist)
                dist += p.states
            if pad:
                nop = f"    s_nop {pad - 1}"
                out.append(nop); hist.append(Ins(nop))
            out.append(sub); hist.append(ins)
    return out


import os
STAMPS = os.environ.get("STAMPS", "0") == "1"
WS_STAMP = 0x4000000


class Asm:
    def __init__(self):
        self.lines = []
        self.kidx = 0

    def stamp(self, i):
        if STAMPS:
            self(f"s_memrealtime s[{70+2*i}:{71+2*i}]")
            if i == 0:
                for j in range(1, 8):
                    self(f"s_mov_b32 s{70+2*j}, 0")
                self("s_mov_b32 s94, s2\nv_readfirstlane_b32 s95, v0\ns_memtime s[96:97]\ns_waitcnt lgkmcnt(0)")

    def flush(self, k):
        self.end(flush=True)

    def end(self, flush=False):
        b = 240 if flush else 0
        if STAMPS:
            self(f"""
{"" if flush else "s_waitcnt vmcnt(0)"}
s_memrealtime s[84:85]
s_memtime s[98:99]
s_load_dwordx2 s[88:89], s[0:1], 104
s_waitcnt lgkmcnt(0)
s_sub_u32 s82, s98, s96
s_mov_b32 s90, 0x8000000
s_mov_b32 s91, 0x20000
s_lshr_b32 s95, s95, 6
s_lshl_b32 s94, s94, 3
s_add_u32 s94, s94, s95
s_lshl_b32 s94, s94, 5
s_add_u32 s94, s94, {WS_STAMP + self.kidx * 0x40000}
s_mov_b64 exec, 1
""")
            for j in range(8):
                self(f"v_mov_b32 v{b+j}, s{70+2*j}")
            self(f"v_mov_b32 v{b+8}, 0\nbuffer_store_dwordx4 v[{b}:{b+3}], v{b+8}, s[88:91], s94 offen\nbuffer_store_dwordx4 v[{b+4}:{b+7}], v{b+8}, s[88:91], s94 offen offset:16")
            if flush:
                self("s_mov_b64 exec, -1")
        if not flush:
            self("s_endpgm")

    def __call__(self, s):
        for l in s.strip("\n").split("\n"):
            l = l.strip()
            if not l:
                continue
            if l.endswith(":") or l.startswith(".") or l.startswith(";"):
                self.lines.append(l)
            else:
                self.lines.append("    " + l)

    def srd(self, d, lo, hi, nbytes):
        self(f"s_mov_b32 s{d}, {lo}\ns_mov_b32 s{d+1}, {hi}\ns_mov_b32 s{d+2}, {nbytes}\ns_mov_b32 s{d+3}, 0x20000")

    def srd_off(self, d, base, off, nbytes):
        self(f"s_add_u32 s{d}, s{base}, {off}\ns_addc_u32 s{d+1}, s{base+1}, 0\n"
             f"s_mov_b32 s{d+2}, {nbytes}\ns_mov_b32 s{d+3}, 0x20000")


def vr(a, n=1):
    return f"v{a}" if n == 1 else f"v[{a}:{a+n-1}]"


def ar(a, n=1):
    return f"a{a}" if n == 1 else f"a[{a}:{a+n-1}]"


def sr(a, n=1):
    return f"s{a}" if n == 1 else f"s[{a}:{a+n-1}]"


def kernel_desc(name, vgpr, sgpr, accum=None):
    if STAMPS:
        sgpr = 100
    if accum is None:
        accum = (vgpr + 3) // 4 * 4
    return f""".p2align 6
.amdhsa_kernel {name}
  .amdhsa_next_free_vgpr {vgpr}
  .amdhsa_next_free_sgpr {sgpr}
  .amdhsa_accum_offset {accum}
  .amdhsa_group_segment_fixed_size 0
  .amdhsa_kernarg_size 112
  .amdhsa_user_sgpr_count 2
  .amdhsa_user_sgpr_kernarg_segment_ptr 1
  .amdhsa_system_sgpr_workgroup_id_x 1
.end_amdhsa_kernel"""


def wprefetch(A, wg, vt, sb, dst, vtid=0):
    A(f"""
v_min_u32 v{vt}, 223, v{vtid}
v_mul_u32_u24 v{vt+1}, 4682, v{vt}
v_lshrrev_b32 v{vt+1}, 16, v{vt+1}
v_mul_u32_u24 v{vt+1}, {3584-14*128}, v{vt+1}
v_lshl_add_u32 v{vt+1}, v{vt}, 7, v{vt+1}
v_lshrrev_b32 v{vt+2}, 2, v{vt}
v_and_b32 v{vt}, 3, v{vt}
v_lshlrev_b32 v{vt}, 7, v{vt}
v_lshl_add_u32 v{vt+2}, v{vt+2}, 10, v{vt}
s_lshr_b32 s{sb+5}, s{wg}, 3
s_mul_i32 s{sb+5}, s{sb+5}, 57344
s_bfe_u32 s{sb+6}, s{wg}, 0x10002
s_mul_i32 s{sb+4}, s{sb+6}, 1792
s_lshl_b32 s{sb+6}, s{sb+6}, 9
s_add_u32 s{sb+6}, s{sb+6}, s{sb+5}
s_add_u32 s{sb+5}, s{sb+5}, s{sb+4}
""")
    for i in range(3):
        A.srd(sb, f"s{sb+8+2*i}", f"s{sb+9+2*i}", 1835008)
        A(f"buffer_load_dword v{dst+i}, v{vt+1+(i==2)}, s[{sb}:{sb+3}], s{sb+5+(i==2)} offen")
```

```python
import os
from asmlib import *
from layout import *

US = 8320
NU = 19
WIN = 7
CSO = NU * US
SPO = CSO + 1024
LDS = SPO + 4096

P = dict(ramp=2, slp=6, slps=30, depth0=4, look=6, bstar=29, bss=12, wring=5, sig=3, sig2=2, npark=8, l16=6, p2lim=2, p3lim=99, npl=10, wlead=0, pd=2)
for kv in os.environ.get("KFP", "").split(","):
    if "=" in kv:
        k_, v_ = kv.split("=")
        P[k_] = int(v_)

B1, B2 = 17, 34
NB = B2 + 28

AH, AW, AH2, AW2, ARES = 4, 7, 18, 21, 24
VH0, VH1, VW, VW2A, VW2B, VHH, VR0, VR1 = 10, 11, 12, 13, 14, 15, 16, 17
ST = 10
ACC = 64
HC = 128
X, Y = 32, 48


class Grp:
    def __init__(self, A):
        self.A = A
        self.q = []

    def vm(self, ins, tag=None):
        self.A(ins)
        self.q.append(tag)

    def wait(self, tags):
        idx = [i for i, t in enumerate(self.q) if t in tags]
        if not idx:
            return
        last = max(idx)
        n = len(self.q) - 1 - last
        assert n <= 63
        self.A(f"s_waitcnt vmcnt({n})")
        self.q = self.q[last + 1:]


HSC = ""


def schedule(pre=()):
    need = {}
    relb = {}
    for s in range(16):
        need[s] = [("h", s), ("W", s)]
        need[B1 + s] = [("W", 16 + s)]
    for i in range(28):
        need[B2 + i] = [("W2", i), ("H", i)]
    need[B2 + 27].append(("R", 0))
    bar_of = {u: b for b, us in need.items() for u in us}
    for u, b in bar_of.items():
        relb[u] = b + 2
    for u in need[15]:
        relb[u] = 16
    relb[("W", 31)] = B2 - 1
    g1 = []
    for s in range(16):
        g1 += [("h", s), ("W", s)]
    g1 += [("W", s) for s in range(16, 32)]
    issue = {b: [] for b in range(-2, NB)}
    slot = {}
    free = list(pre) + [x for x in range(NU) if x not in pre]
    rel = {}

    def take(u, b):
        sl = free.pop(0)
        slot[u] = sl
        rel.setdefault(relb[u], []).append(sl)
        issue[b].append(u)
        assert b < bar_of[u], (u, b)
    for n in range(len(pre)):
        g1.remove(("W", n))
        take(("W", n), -2)
    for _ in range(P["depth0"]):
        take(g1.pop(0), -1)
    w2 = [("W2", i) for i in range(28)] + [("R", 0)]
    hh = [("H", i) for i in range(28)]
    bss = B2 + P["bss"]
    for b in range(NB):
        free += rel.pop(b, [])
        n = 0
        lim = 2 if b < 16 else P["l16"] if b in (16, B2 - 1) else 1 + (b & 1) if b < B2 - 1 else P["p2lim"] if b < bss else P["p3lim"]
        infl = lambda: sum(1 for x in slot if bar_of[x] > b and x[0] in ("h", "W"))
        if pre:
            if b < 16:
                lim = 1 + (b & 1) if b >= P["ramp"] else 2
        elif b < 13 and infl() + 2 < P["look"]:
            lim = 3
        while free and n < lim:
            parked = sum(1 for x in slot if x[0] in ("W2", "H"))
            if g1 and (b < 15 or infl() < P["wring"] - 2):
                take(g1.pop(0), b)
            elif g1 and parked >= NU - P["wring"]:
                break
            else:
                nw = 29 - len(w2); nh = 28 - len(hh)
                hok = hh and b >= (P["bstar"] if nh < 14 else bss)
                if hok and (nh < nw - (P["wlead"] if nh >= 14 else 0) or not w2):
                    take(hh.pop(0), b)
                elif w2 and nw - nh < (P["npark"] if nh < 14 else P["npl"]):
                    take(w2.pop(0), b)
                elif g1:
                    take(g1.pop(0), b)
                else:
                    break
            n += 1
    assert not g1 and not w2 and not hh
    return slot, issue, need


def dma(G, u, slot):
    A = G.A
    base = slot[u] * US
    kind, i = u
    if kind == "h":
        A(f"s_add_u32 m0, s52, {base}\ns_add_u32 s54, s48, {i*0x20000}")
        G.vm(f"buffer_load_dwordx4 v{VH0}, s[20:23], s54 offen {HSC} lds", u)
        G.vm(f"buffer_load_dwordx4 v{VH1}, s[20:23], s54 offen offset:1024 {HSC} lds", u)
    elif kind == "W":
        s, p = i % 16, i // 16
        A(f"s_add_u32 m0, s53, {base}\ns_add_u32 s54, s49, {s*32*3584+p*128}")
        G.vm(f"buffer_load_dwordx4 v{VW}, s[24:27], s54 offen lds", u)
        A(f"s_add_u32 m0, s53, {base+4160}")
        G.vm(f"buffer_load_dwordx4 v{VW}, s[28:31], s54 offen lds", u)
    elif kind == "W2":
        n, p = i % 14, i // 14
        A(f"s_add_u32 m0, s52, {base}\ns_add_u32 s54, s50, {(128*n+64*p)*1024}")
        G.vm(f"buffer_load_dwordx4 v{VW2A}, s[32:35], s54 offen lds", u)
        G.vm(f"buffer_load_dwordx4 v{VW2B}, s[32:35], s54 offen offset:1024 lds", u)
    elif kind == "H":
        n, p = i % 14, i // 14
        A(f"s_add_u32 m0, s52, {base}\ns_add_u32 s54, s51, {(8*n+4*p)*1024}")
        G.vm(f"buffer_load_dwordx4 v{VHH}, s[36:39], s54 offen sc1 lds", u)
        G.vm(f"buffer_load_dwordx4 v{VHH}, s[36:39], s54 offen offset:1024 sc1 lds", u)
    else:
        A(f"s_add_u32 m0, s52, {base}")
        G.vm(f"buffer_load_dwordx4 v{VR0}, s[20:23], s55 offen {HSC} lds", u)
        G.vm(f"buffer_load_dwordx4 v{VR1}, s[20:23], s55 offen offset:1024 {HSC} lds", u)


def lds_at(areg, slot, off):
    return f"v{areg + slot // WIN} offset:{(slot % WIN) * US + off}"


def poll(G, dst, voff, soff, label, expect=None, issue=True, check=True, x2=False, slp=4):
    A = G.A
    ld = (f"buffer_load_dwordx2 {vr(dst,2)}" if x2 else f"buffer_load_dword v{dst}") + f", v{voff}, s[40:43], s{soff} offen sc1"
    one, full = ("", "") if x2 else ("s_mov_b64 exec, 1\n", "s_mov_b64 exec, -1\n")
    if issue:
        A(one + ";")
        G.vm(ld, label)
        A(full + ";")
    if check:
        G.wait([label])
        cmpi = f"v_cmp_eq_u32 vcc, 0, v{dst+1}" if x2 else f"v_cmp_ne_u32 vcc, {expect}, v{dst}"
        A(f"{one}{cmpi}\ns_nop 4\ns_cbranch_vccz {label}_ok\n{label}_lp:\ns_sleep {slp}\n{ld}\ns_add_u32 s68, s68, 1\ns_waitcnt vmcnt(0)\n{cmpi}\n"
          f"s_cmp_gt_u32 s68, 0x20000\ns_cbranch_scc1 {label}_ok\ns_nop 3\ns_cbranch_vccnz {label}_lp\n{label}_ok:\n{full};")


def epilogue(G, p):
    A = G.A
    T = 56

    def csreads(j):
        for mat in range(2):
            for hq in range(2):
                A(f"ds_read_b128 {vr(X+8*mat+4*hq,4)}, v27 offset:{mat*512+(64*p+16*j+8*hq)*4}")
    csreads(0)
    if p == 0:
        poll(G, ST, 26, 56, "KF_st", issue=False, x2=True)
        A(f"v_rcp_f32 v{ST+2}, v{ST+1}\nv_mul_f32 v{ST+3}, v{ST+1}, v{ST+1}\nv_mul_f32 v{ST+2}, 0xbfb8aa3b, v{ST+2}")
    else:
        A("s_add_u32 s57, s57, 4096\ns_add_u32 s58, s58, 256")
    for j in range(4):
        a = ACC + 16 * j
        A("s_waitcnt lgkmcnt(0)")
        for q in range(8):
            A(f"v_pk_fma_f32 {vr(a+2*q,2)}, {vr(X+2*q,2)}, {vr(ST,2)}, {vr(a+2*q,2)} op_sel_hi:[1,0,1] neg_lo:[1,0,0] neg_hi:[1,0,0]")
        if j < 3:
            csreads(j + 1)
        for q in range(4):
            A(f"v_pk_mul_f32 {vr(T+2*q,2)}, {vr(a+2*q,2)}, {vr(ST+2,2)} op_sel_hi:[1,0]")
        for q in range(8):
            A(f"v_exp_f32 v{T+q}, v{T+q}")
        for q in range(4):
            A(f"v_pk_mul_f32 {vr(a+2*q,2)}, {vr(a+2*q,2)}, {vr(a+8+2*q,2)}")
        for q in range(4):
            A(f"v_pk_fma_f32 {vr(T+2*q,2)}, {vr(T+2*q,2)}, {vr(ST+2,2)}, {vr(ST+2,2)} op_sel:[0,1,1] op_sel_hi:[1,1,1]")
        for q in range(8):
            A(f"v_rcp_f32 v{T+q}, v{T+q}")
        for q in range(4):
            A(f"v_pk_mul_f32 {vr(a+2*q,2)}, {vr(a+2*q,2)}, {vr(T+2*q,2)}")
        o = 48 + 4 * (j & 1)
        for q in range(4):
            A(f"v_cvt_pk_bf16_f32 v{o+q}, v{a+2*q}, v{a+2*q+1}")
        G.vm(f"buffer_store_dwordx4 {vr(o,4)}, v3, s[36:39], s57 offen offset:{1024*j} {os.environ.get('STF', 'sc1')}", "st")


def signal(G):
    G.wait(["st"])
    G.A("s_mov_b64 exec, 1")
    G.vm("buffer_atomic_add v25, v28, s[40:43], s58 offen sc1")
    G.A("s_mov_b64 exec, -1")


def g1_reads(S, slot, p, s, ks):
    L = []
    if p == 0:
        for rd in range(2):
            L.append(f"ds_read_b64_tr_b16 {vr(HC+8*s+4*ks+2*rd,2)}, {lds_at(AH, slot[('h', s)], ks*4096+rd*1024)}")
    for j in range(4):
        for rd in range(2):
            L.append(f"ds_read_b64_tr_b16 {vr(S+4*j+2*rd,2)}, {lds_at(AW, slot[('W', 16*p+s)], ks*1024+rd*256+j*32)}")
    return L


def g1_kstep(A, S, hreg, nxt, first):
    n = len(nxt)
    per = [3, 2, 3, 2] if n == 10 else [2, 2, 2, 2] if n == 8 else [0] * 4
    issued = 0
    for j in range(4):
        if j == 0:
            A("s_waitcnt lgkmcnt(4)")
        if j == 2:
            A(f"s_waitcnt lgkmcnt({issued})")
            if n == 0:
                A("s_barrier")
        c = "0" if first else vr(ACC + 16 * j, 16)
        A(f"v_mfma_f32_32x32x16_bf16 {vr(ACC+16*j,16)}, {vr(S+4*j,4)}, {vr(hreg,4)}, {c}")
        for _ in range(per[j]):
            A(nxt.pop(0)); issued += 1


def g1_phase(G, slot, p, hooks):
    A = G.A
    A("s_barrier")
    for r in g1_reads(X, slot, p, 0, 0):
        A(r)
    for s in range(16):
        g1_kstep(A, X, HC + 8 * s, g1_reads(Y, slot, p, s, 1), s == 0)
        for h in hooks.get(s + 1, []):
            h()
        if s < 15:
            A("s_barrier")
        g1_kstep(A, Y, HC + 8 * s + 4, g1_reads(X, slot, p, s + 1, 0) if s < 15 else [], False)


def loader_ticks(G, slot, issue, need, b_from, name):
    A = G.A
    first_h = {}
    for b in range(-1, NB):
        for u in issue[b]:
            if u in (("H", 0), ("H", 14)):
                first_h[u[1] // 14] = b
    for b in range(b_from, NB - 1):
        for ph in range(2):
            if b == first_h[ph] - P["pd"]:
                poll(G, 29, 28, 59 + ph, f"KF_p{name}{ph}", 28, check=False)
        for u in issue[b]:
            if u in (("H", 0), ("H", 14)):
                ph = u[1] // 14
                A.stamp(2 + 2 * ph)
                poll(G, 29, 28, 59 + ph, f"KF_p{name}{ph}", 28, issue=False, slp=(P["slps"] if name == "S" else P["slp"]))
                A.stamp(3 + 2 * ph)
            dma(G, u, slot)
        G.wait(need.get(b + 1, [])); A("s_barrier")


def p2_compute(G, slot):
    A = G.A
    X2, Y2, AC2 = 128, 160, 192

    def reads(S, i):
        L = []
        for j in range(4):
            L.append(f"ds_read_b128 {vr(S+8*j,4)}, {lds_at(AH2, slot[('H', i)], 1024*j)}")
            for rd in range(2):
                L.append(f"ds_read_b64_tr_b16 {vr(S+8*j+4+2*rd,2)}, {lds_at(AW2, slot[('W2', i)], 2048*j+1024*rd)}")
        return L
    A("s_barrier")
    for r in reads(X2, 0):
        A(r)
    for i in range(28):
        S, N = (X2, Y2) if i % 2 == 0 else (Y2, X2)
        if i == P["sig2"]:
            A("s_cmp_ge_u32 s66, 28\ns_cbranch_scc1 KF_nosig")
            signal(G)
            A("KF_nosig:")
        if i < 27:
            A("s_barrier")
            nxt = reads(N, i + 1)
        else:
            nxt = [f"ds_read_b64_tr_b16 {vr(N+2*q,2)}, v{ARES} offset:{1024*q}" for q in range(4)]
        for j in range(4):
            A(f"s_waitcnt lgkmcnt({9 if i < 27 else 9 - 2 * j})")
            c = "0" if i == 0 and j == 0 else vr(AC2, 16)
            A(f"v_mfma_f32_32x32x16_bf16 {vr(AC2,16)}, {vr(S+8*j+4,4)}, {vr(S+8*j,4)}, {c}")
            for _ in range(3 if i < 27 else 1):
                A(nxt.pop(0))
    A.stamp(5)
    R, T = X2, Y2
    A("""
v_and_b32 v30, 31, v2
v_lshrrev_b32 v31, 5, v2
v_lshlrev_b32 v30, 10, v30
v_lshl_add_u32 v30, v31, 4, v30
s_and_b32 s61, s12, 1
s_lshl_b32 s61, s61, 15
s_lshl_b32 s54, s18, 16
s_add_u32 s54, s54, s61
s_add_u32 s54, s54, s50
s_lshr_b32 s61, s12, 1
s_lshl_b32 s61, s61, 6
s_add_u32 s54, s54, s61
s_mov_b32 s61, 0xffff0000
s_waitcnt lgkmcnt(0)
""")
    for i in range(8):
        A(f"v_lshlrev_b32 v{T+2*i}, 16, v{R+i}\nv_and_b32 v{T+2*i+1}, s61, v{R+i}")
    for i in range(8):
        A(f"v_cvt_pk_bf16_f32 v{R+i}, v{AC2+2*i}, v{AC2+2*i+1}")
    for i in range(8):
        A(f"v_lshlrev_b32 v{AC2+2*i}, 16, v{R+i}\nv_and_b32 v{AC2+2*i+1}, s61, v{R+i}")
    for i in range(8):
        A(f"v_pk_add_f32 {vr(AC2+2*i,2)}, {vr(AC2+2*i,2)}, {vr(T+2*i,2)}")
    for i in range(8):
        A(f"v_cvt_pk_bf16_f32 v{R+i}, v{AC2+2*i}, v{AC2+2*i+1}")
    for p in range(2):
        A(f"v_permlane32_swap_b32 v{R+4*p}, v{R+4*p+2}")
        A(f"v_permlane32_swap_b32 v{R+4*p+1}, v{R+4*p+3}")
    for p in range(2):
        A(f"buffer_store_dwordx4 {vr(R+4*p,4)}, v30, s[44:47], s54 offen offset:{32*p}")
    A.end()


def setup_g1_dma(A):
    A(f"""
v_lshrrev_b32 v30, 4, v2
v_and_b32 v31, 15, v2
v_lshlrev_b32 v29, 2, v30
v_xor_b32 v31, v31, v29
v_lshlrev_b32 v31, 4, v31
v_lshl_add_u32 v{VH0}, v30, 12, v31
s_lshl_b32 s54, s12, 15
v_add_u32 v{VH0}, s54, v{VH0}
v_add_u32 v{VH1}, {16384-1024}, v{VH0}
v_bfe_u32 v31, v2, 3, 1
v_add_u32 v31, v29, v31
s_lshr_b32 s54, s12, 1
s_lshl_b32 s54, s54, 4
s_and_b32 s61, s12, 1
s_lshl_b32 s62, s61, 1
s_add_u32 s54, s54, s62
v_add_u32 v31, s54, v31
v_mul_u32_u24 v31, 3584, v31
v_and_b32 v30, 7, v2
v_lshl_add_u32 v{VW}, v30, 4, v31
s_mul_i32 s53, s61, 2080
s_lshr_b32 s54, s12, 1
s_lshl_b32 s54, s54, 10
s_add_u32 s53, s53, s54
""")


def setup_g2_ids(A):
    A(f"""
s_and_b32 s61, s2, 3
s_bfe_u32 s62, s2, 0x10002
s_lshl_b32 s18, s61, 3
s_and_b32 s54, s66, 7
s_add_u32 s18, s18, s54
s_lshl_b32 s19, s62, 2
s_lshr_b32 s54, s66, 3
s_add_u32 s19, s19, s54
s_lshl_b32 s50, s19, 7
s_mov_b32 s68, 0
""")
    A.srd_off(36, 64, WS_HH, 64 * 112 * 1024)
    A.srd_off(40, 64, WS_CS, 0x100000)


def setup_loader_rest(A):
    A.srd(32, "s8", "s9", 1835008)
    A(f"""
s_mul_i32 s51, s18, {2*112*1024}
v_lshrrev_b32 v30, 3, v2
v_and_b32 v31, 7, v2
v_lshrrev_b32 v29, 2, v2
v_and_b32 v29, 4, v29
v_xor_b32 v31, v31, v29
v_lshlrev_b32 v31, 4, v31
s_lshl_b32 s54, s12, 4
v_add_u32 v30, s54, v30
v_lshl_add_u32 v{VW2A}, v30, 10, v31
v_add_u32 v{VW2B}, {8192-1024}, v{VW2A}
v_lshl_add_u32 v{VR0}, v30, 12, v31
v_add_u32 v{VR1}, {32768-1024}, v{VR0}
s_lshr_b32 s62, s12, 1
s_and_b32 s61, s12, 1
s_mul_i32 s54, s62, {112*1024}
s_lshl_b32 s63, s61, 11
s_add_u32 s54, s54, s63
v_lshl_add_u32 v{VHH}, v2, 4, s54
s_lshl_b32 s55, s19, 18
s_lshl_b32 s54, s18, 7
s_add_u32 s55, s55, s54
v_mov_b32 v28, 0
s_lshl_b32 s59, s18, 9
s_add_u32 s59, s59, {MI_CN}
s_add_u32 s60, s59, 256
""")


def setup_compute(A, slot):
    A.srd(44, "s10", "s11", 0x200000)
    A(f"""
v_lshlrev_b32 v3, 4, v2
s_lshr_b32 s62, s12, 1
s_and_b32 s61, s12, 1
v_lshrrev_b32 v25, 5, v2
v_bfe_u32 v26, v2, 2, 2
v_bfe_u32 v27, v2, 4, 1
v_and_b32 v28, 3, v2
v_lshl_add_u32 v29, v25, 3, v26
v_xor_b32 v30, s12, v26
v_lshlrev_b32 v{AH}, 8, v29
v_lshl_add_u32 v{AH}, v30, 6, v{AH}
v_lshl_add_u32 v{AH}, v27, 5, v{AH}
v_lshl_add_u32 v{AH}, v28, 3, v{AH}
v_mul_u32_u24 v{AW}, 4160, v27
v_lshrrev_b32 v30, 1, v26
v_mul_u32_u24 v31, 2080, v30
v_add_u32 v{AW}, v{AW}, v31
v_and_b32 v31, 1, v26
v_lshl_add_u32 v{AW}, v31, 7, v{AW}
v_lshl_add_u32 v{AW}, v25, 9, v{AW}
v_lshl_add_u32 v{AW}, v28, 3, v{AW}
v_lshl_add_u32 v29, v25, 2, v26
v_lshlrev_b32 v29, 7, v29
v_lshl_add_u32 v29, v27, 5, v29
v_lshl_add_u32 v29, v28, 3, v29
v_xor_b32 v31, s62, v30
v_lshl_add_u32 v{AW2}, v31, 6, v29
v_xor_b32 v31, s61, v30
v_lshl_add_u32 v{ARES}, v31, 6, v29
s_lshl_b32 s54, s62, 12
s_add_u32 s54, s54, {slot[('R', 0)] * US}
v_add_u32 v{ARES}, s54, v{ARES}
s_lshl_b32 s54, s61, 12
v_add_u32 v{AH2}, s54, v3
""")
    for a in (AH, AW, AH2, AW2):
        A(f"v_add_u32 v{a+1}, {WIN*US}, v{a}\nv_add_u32 v{a+2}, {2*WIN*US}, v{a}")
    A(f"""
v_lshlrev_b32 v27, 4, v25
v_add_u32 v27, {CSO}, v27
v_and_b32 v26, 31, v2
v_lshlrev_b32 v26, 3, v26
v_mov_b32 v25, 1
v_mov_b32 v28, 0
s_lshl_b32 s54, s16, 2
s_add_u32 s54, s54, s12
s_lshl_b32 s56, s54, 8
s_add_u32 s56, s56, {MI_ST}
s_mul_i32 s57, s54, 112
s_lshl_b32 s63, s17, 3
s_add_u32 s57, s57, s63
s_lshl_b32 s57, s57, 10
s_andn2_b32 s58, s54, 1
s_lshl_b32 s58, s58, 8
s_add_u32 s58, s58, {MI_CN}
""")


def stats_wg(A, mega=False):
    A(f"""
s_and_b32 s14, s2, 3
s_lshl_b32 s14, s14, 3
s_and_b32 s54, s2, 4
s_add_u32 s14, s14, s54
s_and_b32 s54, s66, 3
s_add_u32 s14, s14, s54
v_lshrrev_b32 v30, 3, v2
v_and_b32 v31, 7, v2
v_lshlrev_b32 v31, 4, v31
v_lshl_add_u32 v30, v30, 12, v31
s_lshl_b32 s54, s3, 18
s_lshl_b32 s61, s14, 7
s_add_u32 s54, s54, s61
buffer_load_dwordx4 v[96:99], v31, s[20:23], s61 offen {HSC}
""")
    for i in range(8):
        A(f"buffer_load_dwordx4 {vr(64+4*i,4)}, v30, s[20:23], s54 offen {HSC}")
        if i < 7:
            A("s_add_u32 s54, s54, 0x8000")
    A(f"v_lshlrev_b32 v29, 1, v2\nbuffer_load_ushort v100, v29, s[20:23], s61 offen {HSC}")
    if not mega:
        setup_g2_ids(A)
    A("s_mov_b32 s61, 0xffff0000\ns_waitcnt vmcnt(8)")
    PV, S, Q, T = 104, 112, 120, 128
    for i in range(4):
        A(f"v_lshlrev_b32 v{PV+2*i}, 16, v{96+i}\nv_and_b32 v{PV+2*i+1}, s61, v{96+i}")
    for r in range(8):
        if r:
            A(f"s_waitcnt vmcnt({8-r})")
        for i in range(4):
            A(f"v_lshlrev_b32 v{T+2*i}, 16, v{64+4*r+i}\nv_and_b32 v{T+2*i+1}, s61, v{64+4*r+i}")
        for i in range(4):
            d = S if r == 0 else T
            A(f"v_pk_add_f32 {vr(d+2*i,2)}, {vr(T+2*i,2)}, {vr(PV+2*i,2)} neg_lo:[0,1] neg_hi:[0,1]")
        for i in range(4):
            if r == 0:
                A(f"v_pk_mul_f32 {vr(Q+2*i,2)}, {vr(S+2*i,2)}, {vr(S+2*i,2)}")
            else:
                A(f"v_pk_add_f32 {vr(S+2*i,2)}, {vr(S+2*i,2)}, {vr(T+2*i,2)}")
                A(f"v_pk_fma_f32 {vr(Q+2*i,2)}, {vr(T+2*i,2)}, {vr(T+2*i,2)}, {vr(Q+2*i,2)}")
    for b in (S, Q):
        for e in range(4):
            A(f"v_permlane32_swap_b32 v{b+e}, v{b+e+4}")
    for b in (S, Q):
        for e in range(4):
            A(f"v_add_f32 v{b+e}, v{b+e}, v{b+e+4}")
    for b in (S, Q):
        for e in range(2):
            A(f"v_permlane16_swap_b32 v{b+e}, v{b+e+2}")
    A(f"""
v_add_f32 v{T}, v{S}, v{S+2}
v_add_f32 v{T+1}, v{Q}, v{Q+2}
v_add_f32 v{T+2}, v{S+1}, v{S+3}
v_add_f32 v{T+3}, v{Q+1}, v{Q+3}
""")
    for e in range(4):
        A(f"v_add_f32_dpp v{T+e}, v{T+e}, v{T+e} row_ror:8 row_mask:0xf bank_mask:0xf")
    A(f"""
v_lshlrev_b32 v31, 2, v31
v_lshrrev_b32 v30, 4, v2
v_lshl_add_u32 v31, v30, 4, v31
s_lshl_b32 s54, s3, 9
s_add_u32 s54, s54, {SPO}
v_add_u32 v31, s54, v31
ds_write_b128 v31, {vr(T,4)}
v_lshlrev_b32 v30, 3, v2
v_add_u32 v31, {SPO}, v30
s_waitcnt lgkmcnt(0)
s_barrier
s_cmp_lg_u32 s3, 0
s_cbranch_scc1 KF_sdone
""")
    for w in range(8):
        A(f"ds_read_b64 {vr(64+2*w,2)}, v31 offset:{512*w}")
    A(f"""
s_lshl_b32 s54, s14, 9
s_add_u32 s54, s54, {MI_ST}
s_mov_b32 s62, 0x3b000000
s_waitcnt vmcnt(0) lgkmcnt(0)
v_pk_add_f32 v[64:65], v[64:65], v[66:67]
v_pk_add_f32 v[68:69], v[68:69], v[70:71]
v_pk_add_f32 v[72:73], v[72:73], v[74:75]
v_pk_add_f32 v[76:77], v[76:77], v[78:79]
v_pk_add_f32 v[64:65], v[64:65], v[68:69]
v_pk_add_f32 v[72:73], v[72:73], v[76:77]
v_lshlrev_b32 v100, 16, v100
v_pk_add_f32 v[64:65], v[64:65], v[72:73]
v_mul_f32 v64, s62, v64
v_mul_f32 v65, s62, v65
v_fma_f32 v65, -v64, v64, v65
v_add_f32 v64, v64, v100
v_max_f32 v65, 0, v65
v_cvt_pk_bf16_f32 v66, v64, v65
v_lshlrev_b32 v64, 16, v66
v_and_b32 v65, s61, v66
v_add_f32 v65, 0x3727c5ac, v65
v_cvt_pk_bf16_f32 v65, v65, v65
v_lshlrev_b32 v65, 16, v65
v_sqrt_f32 v65, v65
v_cvt_pk_bf16_f32 v65, v65, v65
v_lshlrev_b32 v65, 16, v65
buffer_store_dwordx2 v[64:65], v30, s[40:43], s54 offen sc1
KF_sdone:
s_waitcnt vmcnt(0)
""")


def compute_main(A, slot, mega=False):
    GC = Grp(A)
    CB = 248
    A(f"""
s_lshr_b32 s61, s12, 1
s_mul_i32 s63, s61, 7168
s_lshl_b32 s61, s17, 9
s_add_u32 s63, s63, s61
s_and_b32 s61, s12, 1
s_lshl_b32 s61, s61, 8
s_add_u32 s63, s63, s61
v_lshlrev_b32 v31, 2, v2
v_lshlrev_b32 v30, 2, v0
v_add_u32 v30, {CSO}, v30
""")

    def cs0(r0):
        for r in range(r0, r0 + 2):
            GC.vm(f"buffer_load_dword v{CB+r}, v31, s[40:43], s63 offen {HSC}", "cs")
            A("s_add_u32 s63, s63, 14336")

    def cs1():
        GC.wait(["cs"])
        for r in range(0, 8, 2):
            A(f"v_add_f32 v{CB+r}, v{CB+r}, v{CB+r+1}")

    def cs2():
        A(f"v_add_f32 v{CB}, v{CB}, v{CB+2}\nv_add_f32 v{CB+4}, v{CB+4}, v{CB+6}\nv_add_f32 v{CB}, v{CB}, v{CB+4}\nds_write_b32 v30, v{CB}")
    hooks = {10: [cs1], 11: [cs2], 14: [lambda: poll(GC, ST, 26, 56, "KF_st", check=False, x2=True)]}
    for r0 in range(0, 8, 2):
        if mega:
            hooks[1 + r0 // 2] = [(lambda x: lambda: cs0(x))(r0)]
        else:
            cs0(r0)
    A.stamp(1)
    g1_phase(GC, slot, 0, hooks)
    A.stamp(2)
    epilogue(GC, 0)
    A.stamp(3)
    g1_phase(GC, slot, 1, {P["sig"]: [lambda: signal(GC)]})
    A.stamp(4)
    epilogue(GC, 1)
    A("KF_P2:")
    p2_compute(GC, slot)


def s_loader(A, slot, issue, need):
    GS = Grp(A)
    pre = [u for b in range(-1, B2) for u in issue[b] if u[0] in ("W2", "H", "R")]
    for u in pre:
        if u[0] != "H":
            dma(GS, u, slot)
    poll(GS, 29, 28, 59, "KF_ps", 28, slp=P["slps"])
    for u in pre:
        if u[0] == "H":
            dma(GS, u, slot)
    GS.wait(need[B2]); A("s_barrier")
    loader_ticks(GS, slot, issue, need, B2, "S")
    A.end()


def kf(A, kidx=2):
    slot, issue, need = schedule()
    if os.environ.get("KFV"):
        for b in range(-1, NB):
            print(b, [(u, slot[u]) for u in issue[b]])
    A("""
.globl kf_kernel
.p2align 8
.type kf_kernel,@function
kf_kernel:
; @reset
""")
    A.kidx = kidx
    A.stamp(0)
    A(f"""
s_cmp_ge_u32 s2, 256
s_cbranch_scc1 KF_done
s_load_dwordx8 s[4:11], s[0:1], 64
s_load_dwordx2 s[64:65], s[0:1], 104
v_lshrrev_b32 v1, 6, v0
v_and_b32 v2, 63, v0
v_readfirstlane_b32 s3, v1
s_and_b32 s61, s2, 3
s_bfe_u32 s62, s2, 0x10002
s_lshr_b32 s66, s2, 3
s_and_b32 s12, s3, 3
s_lshl_b32 s16, s61, 2
s_and_b32 s54, s66, 3
s_add_u32 s16, s16, s54
s_mul_i32 s17, s62, 7
s_lshr_b32 s54, s66, 2
s_add_u32 s17, s17, s54
s_lshl_b32 s52, s12, 11
s_cmp_ge_u32 s66, 28
s_cbranch_scc1 KF_S
s_cmp_lt_u32 s3, 4
s_cbranch_scc1 KF_C
s_lshl_b32 s48, s16, 8
s_lshl_b32 s49, s17, 8
""")
    setup_g1_dma(A)
    A("s_mov_b32 s22, 0x200000\ns_mov_b32 s23, 0x20000\ns_mov_b32 s26, 1835008\ns_mov_b32 s27, 0x20000\ns_mov_b32 s30, 1835008\ns_mov_b32 s31, 0x20000")
    A(f"s_waitcnt lgkmcnt(0)\ns_add_u32 s20, s64, {WS_HT}\ns_addc_u32 s21, s65, 0\ns_mov_b32 s24, s4\ns_mov_b32 s25, s5\ns_mov_b32 s28, s6\ns_mov_b32 s29, s7")
    GL = Grp(A)
    for u in issue[-1]:
        dma(GL, u, slot)
    setup_g2_ids(A)
    setup_loader_rest(A)
    A.stamp(1)
    GL.wait(need[0]); A("s_barrier")
    loader_ticks(GL, slot, issue, need, 0, "L")
    A.end()
    A("; @reset\nKF_C:")
    A("s_waitcnt lgkmcnt(0)")
    setup_g2_ids(A)
    setup_compute(A, slot)
    compute_main(A, slot)
    A("; @reset\nKF_S:\ns_waitcnt lgkmcnt(0)")
    A.srd_off(20, 64, WS_HT, 0x200000)
    stats_wg(A)
    A.stamp(1)
    A("s_cmp_lt_u32 s3, 4\ns_cbranch_scc0 KF_SL")
    setup_compute(A, slot)
    A("s_branch KF_P2")
    A("KF_SL:")
    setup_loader_rest(A)
    s_loader(A, slot, issue, need)
    A("KF_done:\ns_endpgm")
    return dict(name="kf_kernel", grid=256, block=512, lds=LDS, vgpr=256, sgpr=70)
```

```python
import os
from asmlib import *
from layout import *
import kf2
from kf2 import Grp, P, US
from k1 import cmul, interleave, red32, LOG2E, INV2PI

NAME = "sequential_preLN__ssm_conv_s4d__glu_gated_swiglu__prompt_kernel"
TT = 83200
TILES = TT + 12288
KCOPY = 4160
KC0 = 13 * US
UX0 = KC0 + 8 * KCOPY
UXS = 4640
CSP = UX0 + 4 * UXS
SY = 163200
LDS = SY + 128
PRE_SLOTS = [0, 1, 2, 3, 4, 5, 6, 7, 8, 9, 12]
S_CNT1, S_FLAG1, S_PAIR, S_CNT2, S_FLAG2, S_CNTS = 64, 68, 72, 80, 84, 88


def lds_spin(A, label, vaddr, off, target, vt, extra=""):
    A(f"""
{label}:
ds_read_b32 v{vt}, v{vaddr} offset:{off}
{extra}
s_add_u32 s68, s68, 1
s_waitcnt lgkmcnt(0)
v_cmp_ne_u32 vcc, {target}, v{vt}
s_cmp_gt_u32 s68, 0x100000
s_cbranch_scc1 {label}_x
s_nop 3
s_cbranch_vccnz {label}
{label}_x:
""")


def grid_wait(A, label, soff, vsy, flag_off, vt, slp=1):
    A(f"""
s_cmp_lg_u32 s3, 4
s_cbranch_scc1 {label}_o
v_lshlrev_b32 v{vt}, 8, v2
s_mov_b64 exec, 0xffff
{label}_p:
buffer_load_dword v{vt+1}, v{vt}, s[40:43], {soff} offen offset:128 sc1
s_add_u32 s68, s68, 1
s_waitcnt vmcnt(0)
v_cmp_ne_u32 vcc, 1, v{vt+1}
s_cmp_gt_u32 s68, 0x100000
s_cbranch_scc1 {label}_d
s_nop 3
s_cbranch_vccz {label}_d
s_sleep {slp}
s_branch {label}_p
{label}_d:
s_mov_b64 exec, -1
v_mov_b32 v{vt+1}, 1
ds_write_b32 v{vsy}, v{vt+1} offset:{flag_off}
s_branch {label}_e
{label}_o:
""")
    lds_spin(A, label + "_s", vsy, flag_off, 1, vt + 1, extra="s_sleep 1")
    A(f"{label}_e:")


def grid_arrive(A, label, soff_shard, vz, vt):
    A(f"""
v_mov_b32 v{vt}, 1
buffer_atomic_add v{vt}, v{vz}, s[40:43], s{soff_shard} offen sc0 sc1
s_waitcnt vmcnt(0)
v_cmp_ne_u32 vcc, 15, v{vt}
v_mov_b32 v{vt}, 1
s_nop 3
s_cbranch_vccnz {label}
buffer_store_dword v{vt}, v{vz}, s[40:43], s{soff_shard} offen offset:128 sc1
""")


def front_L(A):
    A(f"""
s_load_dwordx2 s[4:5], s[0:1], 0
s_load_dwordx4 s[8:11], s[0:1], 96
v_and_b32 v1, 255, v0
s_lshl_b32 s17, s2, 13
v_lshrrev_b32 v5, 5, v1
v_and_b32 v4, 31, v1
v_lshlrev_b32 v6, 10, v5
v_lshl_add_u32 v6, v4, 4, v6
v_lshlrev_b32 v3, 2, v1
s_add_u32 s18, s17, 4096
s_mov_b32 s22, 2097152
s_mov_b32 s23, 0x20000
v_mov_b32 v7, {SY}
v_mov_b32 v44, 0
s_setprio 2
s_waitcnt lgkmcnt(0)
s_mov_b32 s20, s4
s_mov_b32 s21, s5
buffer_load_dwordx4 v[8:11], v6, s[20:23], s17 offen
buffer_load_dwordx4 v[12:15], v6, s[20:23], s17 offen offset:512
""")
    for t in range(8):
        A(f"buffer_load_dword v{16+t}, v3, s[20:23], {'s17' if t < 4 else 's18'} offen offset:{(t%4)*1024}")
    A(f"""
v_lshl_add_u32 v45, v4, 2, v7
ds_write_b32 v45, v44
s_mov_b32 s64, s10
s_mov_b32 s65, s11
""")
    A.srd_off(40, 64, WS_CS, 0x100000)
    A.srd(24, "s10", "s11", 0x400000)
    A.srd(28, "s8", "s9", 256)
    A.srd_off(44, 64, WS_CS + MI_ST, MI_C1 - MI_ST)
    A(f"""
v_mov_b32 v45, 0
v_mov_b32 v46, 0
v_mov_b32 v47, 0
v_lshlrev_b32 v48, 4, v1
s_lshl_b32 s19, s2, 12
buffer_store_dwordx4 v[44:47], v48, s[44:47], s19 offen sc1
s_waitcnt lgkmcnt(0)
s_barrier
v_lshl_add_u32 v5, v5, 3, v7
s_mov_b32 s32, 0xffff0000
s_mov_b32 s33, 0x3b000000
s_mov_b32 s34, 0x05040100
s_mov_b32 s35, 0x07060302
""")
    A(f"""
s_lshl_b32 s19, s12, 12
v_lshlrev_b32 v80, 6, v2
v_bfe_u32 v81, v2, 1, 2
v_lshl_add_u32 v80, v81, 4, v80
v_add_u32 v80, s19, v80
v_xor_b32 v81, 16, v80
v_xor_b32 v82, 32, v80
v_xor_b32 v83, 48, v80
v_bfe_u32 v84, v2, 3, 2
v_xor_b32 v84, v84, v2
v_lshl_add_u32 v84, v84, 4, s19
v_lshlrev_b32 v85, 4, v2
s_lshl_b32 s36, s2, 14
s_add_u32 s36, s36, s19
""")
    A("s_waitcnt vmcnt(9)")
    A.stamp(1)
    for i in range(8):
        A(f"v_lshlrev_b32 v{24+2*i}, 16, v{8+i}")
        A(f"v_and_b32 v{25+2*i}, s32, v{8+i}")
    for i in range(4):
        A(f"v_add_f32 v{40+i}, v{24+i}, v{28+i}")
    for i in range(4):
        A(f"v_add_f32 v{44+i}, v{32+i}, v{36+i}")
    for i in range(4):
        A(f"v_add_f32 v{40+i}, v{40+i}, v{44+i}")
    A("v_add_f32 v40, v40, v41\nv_add_f32 v42, v42, v43\nv_add_f32 v40, v40, v42")
    red32(A, 40, 41)
    A("v_mul_f32 v40, s33, v40")
    for i in range(16):
        A(f"v_sub_f32 v{24+i}, v{24+i}, v40")
    for i in range(4):
        A(f"v_mul_f32 v{42+i}, v{24+i}, v{24+i}")
    for i in range(4, 16):
        A(f"v_fmac_f32 v{42+i%4}, v{24+i}, v{24+i}")
    A("v_add_f32 v42, v42, v43\nv_add_f32 v44, v44, v45\nv_add_f32 v42, v42, v44")
    red32(A, 42, 43)
    A(f"""
v_mul_f32 v42, s33, v42
v_cvt_pk_bf16_f32 v44, v40, v42
v_lshlrev_b32 v40, 16, v44
v_and_b32 v42, s32, v44
v_add_f32 v42, 0x3727c5ac, v42
v_cvt_pk_bf16_f32 v42, v42, v42
v_lshlrev_b32 v42, 16, v42
v_sqrt_f32 v42, v42
v_cvt_pk_bf16_f32 v42, v42, v42
v_lshlrev_b32 v42, 16, v42
v_rcp_f32 v41, v42
v_mov_b32 v43, 1
ds_write_b64 v5, v[40:41]
s_mov_b64 exec, 1
ds_add_u32 v7, v43 offset:{S_CNTS}
s_mov_b64 exec, -1
s_waitcnt vmcnt(1)
""")
    for i in range(4):
        A(f"v_perm_b32 v{64+i}, v{17+2*i}, v{16+2*i}, s34")
        A(f"v_perm_b32 v{68+i}, v{17+2*i}, v{16+2*i}, s35")
    A("ds_write_b128 v82, v[64:67]\nds_write_b128 v83, v[68:71]")
    for t in range(8):
        A(f"v_lshlrev_b32 v{24+2*t}, 16, v{16+t}")
        A(f"v_and_b32 v{25+2*t}, s32, v{16+t}")
    lds_spin(A, "M_lnsp", 7, S_CNTS, 4, 44,
             extra="\n".join(f"ds_read_b128 {vr(48+4*i,4)}, v7 offset:{16*i}" for i in range(4)))
    A.stamp(2)
    for t in range(8):
        A(f"v_sub_f32 v{24+2*t}, v{24+2*t}, v{48+2*t}\nv_sub_f32 v{25+2*t}, v{25+2*t}, v{48+2*t}")
    for t in range(8):
        A(f"v_cvt_pk_bf16_f32 v{16+t}, v{24+2*t}, v{25+2*t}")
    for t in range(8):
        A(f"v_lshlrev_b32 v{24+2*t}, 16, v{16+t}")
        A(f"v_and_b32 v{25+2*t}, s32, v{16+t}")
    for t in range(8):
        A(f"v_mul_f32 v{24+2*t}, v{24+2*t}, v{49+2*t}\nv_mul_f32 v{25+2*t}, v{25+2*t}, v{49+2*t}")
    for i in range(4):
        A(f"v_cvt_pk_bf16_f32 v{72+i}, v{24+4*i}, v{26+4*i}")
    A("ds_write_b128 v80, v[72:75]")
    for i in range(4):
        A(f"v_cvt_pk_bf16_f32 v{76+i}, v{25+4*i}, v{27+4*i}")
    A("ds_write_b128 v81, v[76:79]")
    for n in range(4):
        A(f"ds_read_b128 {vr(24+4*n,4)}, v84 offset:{1024*n}")
    A("v_mov_b32 v44, 0\ns_mov_b64 exec, 1\nbuffer_load_dword v48, v44, s[28:31], 0 offen sc1\ns_mov_b64 exec, -1")
    for n in range(4):
        A(f"s_waitcnt lgkmcnt({3-n})")
        A(f"buffer_store_dwordx4 {vr(24+4*n,4)}, v85, s[24:27], s36 offen offset:{1024*n} sc1")
    A(f"""
s_and_b32 s19, s2, 15
s_lshl_b32 s19, s19, 8
s_add_u32 s19, s19, {MI_C1}
s_waitcnt vmcnt(0)
s_mov_b64 exec, 1
M_zp:
v_cmp_ne_u32 vcc, 0, v48
s_add_u32 s68, s68, 1
s_cmp_gt_u32 s68, 0x100000
s_cbranch_scc1 M_zok
s_nop 2
s_cbranch_vccnz M_zok
s_sleep 8
buffer_load_dword v48, v44, s[28:31], 0 offen sc1
s_waitcnt vmcnt(0)
s_branch M_zp
M_zok:
ds_add_rtn_u32 v46, v7, v43 offset:{S_CNT1}
s_waitcnt lgkmcnt(0)
v_cmp_ne_u32 vcc, 3, v46
s_nop 4
s_cbranch_vccnz M_nosig1
""")
    grid_arrive(A, "M_nosig1", 19, 44, 46)
    A("M_nosig1:\ns_mov_b64 exec, -1\ns_setprio 0")
    A.stamp(3)
    A(f"""
s_and_b32 s19, s2, 7
s_lshl_b32 s19, s19, 5
s_lshr_b32 s36, s2, 3
s_add_u32 s19, s19, s36
s_lshl_b32 s19, s19, 6
s_lshl_b32 s36, s12, 20
s_add_u32 s36, s36, s19
v_lshrrev_b32 v30, 2, v2
v_and_b32 v31, 3, v2
v_lshlrev_b32 v32, 14, v30
v_lshl_add_u32 v32, v31, 4, v32
v_mul_u32_u24 v33, {UXS}, v31
v_lshl_add_u32 v33, v30, 4, v33
s_lshl_b32 s19, s12, 10
s_add_u32 s19, s19, {UX0+512}
v_add_u32 v33, s19, v33
s_mov_b32 s52, {MI_C1}
s_barrier
""")
    grid_wait(A, "M_g1", "s52", 7, S_FLAG1, 44)
    A.stamp(4)
    for n in range(4):
        A(f"buffer_load_dwordx4 {vr(8+4*n,4)}, v32, s[24:27], s36 offen sc1")
        if n < 3:
            A("s_add_u32 s36, s36, 0x40000")
    for n in range(4):
        A(f"s_waitcnt vmcnt({3-n})")
        A(f"ds_write_b128 v33, {vr(8+4*n,4)} offset:{256*n}")
    A("s_waitcnt lgkmcnt(0)\ns_barrier")
    A.stamp(5)


ZW = 40
EARLY = os.environ.get("EARLY", "1") == "1"


def cs_setup(A):
    A(f"""
s_mul_i32 s20, s2, 2341
s_lshr_b32 s20, s20, 16
s_mul_i32 s21, s20, 28
s_sub_u32 s21, s2, s21
s_mul_i32 s22, s3, 57344
v_lshlrev_b32 v25, 2, v2
s_cmp_ge_u32 s21, 14
s_cselect_b32 s23, 14, 0
s_cselect_b32 s28, s58, s56
s_cselect_b32 s29, s59, s57
s_mov_b32 s30, 1835008
s_mov_b32 s31, 0x20000
s_sub_u32 s23, s21, s23
s_lshl_b32 s23, s23, 8
s_add_u32 s22, s22, s23
s_mul_i32 s23, s20, 229376
s_add_u32 s22, s22, s23
""")
    A(f"""
s_mov_b32 s32, s66
s_mov_b32 s33, s67
s_mov_b32 s34, 1835008
s_mov_b32 s35, 0x20000
v_min_u32 v26, 13, v2
v_lshlrev_b32 v26, 7, v26
s_lshl_b32 s23, s2, 2
s_add_u32 s23, s23, s3
s_mul_i32 s23, s23, 1792
s_mul_i32 s20, s20, 14336
s_lshl_b32 s21, s21, 9
s_add_u32 s55, s20, s21
""")
    chL = []
    for r in range(16):
        chL += [f"buffer_load_dword v{232+r}, v25, s[28:31], s22 offen", "s_add_u32 s22, s22, 3584"]
    chL[-1] = "buffer_load_dword v248, v26, s[32:35], s23 offen"
    return chL


def front_C(A):
    A(f"""
s_load_dwordx8 s[4:11], s[0:1], 8
s_load_dwordx4 s[12:15], s[0:1], 40
s_load_dwordx4 s[60:63], s[0:1], 96
s_load_dwordx4 s[56:59], s[0:1], 64
s_load_dwordx2 s[66:67], s[0:1], 80
s_and_b32 s16, s2, 7
s_lshl_b32 s16, s16, 5
s_lshr_b32 s17, s2, 3
s_add_u32 s19, s16, s17
s_lshl_b32 s16, s19, 9
v_lshlrev_b32 v3, 1, v0
s_lshr_b32 s52, s3, 1
s_lshl_b32 s17, s19, 1
s_add_u32 s17, s17, s52
s_lshl_b32 s18, s17, 1
v_mov_b32 v4, 0
""")
    for d in (20, 24, 28, 32):
        A(f"s_mov_b32 s{d+2}, 131072\ns_mov_b32 s{d+3}, 0x20000")
    for d in (36, 40):
        A(f"s_mov_b32 s{d+2}, 1024\ns_mov_b32 s{d+3}, 0x20000")
    A("s_waitcnt lgkmcnt(0)")
    for n, d in enumerate((20, 24, 28, 32, 36, 40)):
        A(f"s_mov_b32 s{d}, s{4+2*n}\ns_mov_b32 s{d+1}, s{5+2*n}")
    A(f"""
s_lshl_b32 s48, s2, 2
s_add_u32 s48, s48, s3
s_sub_u32 s48, s48, {4*ZW}
s_cmp_lg_u32 s48, 0
s_cbranch_scc1 M_noz0
v_lshlrev_b32 v8, 4, v2
v_mov_b32 v5, 0
v_mov_b32 v6, 0
v_mov_b32 v7, 0
""")
    A.srd_off(44, 62, WS_CS + MI_C1, 4096)
    for i in range(4):
        A(f"buffer_store_dwordx4 v[4:7], v8, s[44:47], 0 offen offset:{1024*i} sc1")
    A("""
M_noz0:
buffer_load_ushort v10, v4, s[36:39], s18 offen
buffer_load_ushort v11, v3, s[20:23], s16 offen
buffer_load_ushort v12, v3, s[24:27], s16 offen
buffer_load_ushort v13, v3, s[28:31], s16 offen
buffer_load_ushort v14, v3, s[32:35], s16 offen
buffer_load_ushort v208, v4, s[40:43], s18 offen
s_mov_b32 s64, s62
s_mov_b32 s65, s63
s_barrier
s_cmp_lg_u32 s48, 0
s_cbranch_scc1 M_nozero
s_mov_b32 s62, 256
s_mov_b32 s63, 0x20000
v_mov_b32 v5, 1
s_waitcnt vmcnt(6)
s_mov_b64 exec, 1
buffer_store_dword v5, v4, s[60:63], 0 offen sc1
s_mov_b64 exec, -1
s_waitcnt vmcnt(1)
M_nozero:
""")
    A.srd_off(40, 64, WS_CS, 0x100000)
    if EARLY:
        for l in cs_setup(A):
            A(l)
    A(f"""
s_lshl_b32 s44, s3, 14
s_add_u32 s44, s44, {TILES}
v_lshlrev_b32 v5, 5, v2
v_lshlrev_b32 v6, 2, v2
v_and_b32 v6, 16, v6
v_add3_u32 v5, v5, v6, s44
v_xor_b32 v6, 16, v5
v_lshrrev_b32 v7, 2, v2
v_lshlrev_b32 v7, 5, v7
v_lshlrev_b32 v8, 3, v2
v_and_b32 v8, 24, v8
v_and_b32 v9, 16, v2
v_xor_b32 v8, v8, v9
v_add3_u32 v7, v7, v8, s44
s_mul_i32 s45, s52, 6144
s_add_u32 s45, s45, {TT}
s_and_b32 s47, s3, 1
s_lshl_b32 s46, s47, 2
s_add_u32 s46, s46, s45
v_and_b32 v8, 15, v2
v_lshrrev_b32 v9, 4, v2
v_and_b32 v20, 1, v9
v_lshrrev_b32 v21, 1, v9
v_lshlrev_b32 v16, 3, v8
v_lshl_add_u32 v16, v20, 2, v16
v_lshl_add_u32 v16, v21, 7, v16
v_lshl_add_u32 v16, v16, 3, s46
v_cmp_gt_u32 vcc, 2, v9
v_lshlrev_b32 v17, 1, v8
v_lshlrev_b32 v18, 2, v8
v_cndmask_b32 v17, v17, v18, vcc
v_lshl_add_u32 v17, v9, 6, v17
v_add_u32 v17, 256, v17
v_lshl_add_u32 v17, v17, 3, s46
v_mov_b32 v18, 256
v_cndmask_b32 v18, v18, 16, vcc
v_add_u32 v18, v17, v18
v_lshl_add_u32 v19, v9, 6, v8
v_add_u32 v19, 512, v19
v_lshl_add_u32 v19, v19, 3, s46
""")
    assert TILES % 32 == 0
    GA = 212
    A("""
s_lshl_b32 s48, s47, 10
s_sub_u32 s48, 2047, s48
v_lshlrev_b32 v20, 4, v2
v_sub_u32 v20, s48, v20
s_mov_b32 s49, 0xffffbd80
v_mov_b32 v24, 700
""")
    for i in range(0, 20, 2):
        d = GA + i
        A(f"v_subrev_u32 v21, {i}, v20")
        A(f"v_subrev_u32 v22, {i+1}, v20")
        A(f"v_cvt_f32_i32 v{d}, v21")
        A(f"v_cvt_f32_i32 v{d+1}, v22")
        A(f"v_cvt_pk_bf16_f32 v23, v{d}, v{d+1}")
        if i >= 16:
            A(f"v_cmp_gt_i32 vcc, 0, v21")
        A(f"v_and_b32 v{d}, 0xffff, v23")
        A(f"v_lshrrev_b32 v{d+1}, 16, v23")
        A(f"v_add_u32 v{d}, s49, v{d}")
        A(f"v_add_u32 v{d+1}, s49, v{d+1}")
        A(f"v_min_u32 v21, 128, v21")
        A(f"v_min_u32 v22, 128, v22")
        A(f"v_max_i32 v{d}, v{d}, v21")
        A(f"v_max_i32 v{d+1}, v{d+1}, v22")
        if i >= 16:
            A(f"v_cndmask_b32 v{d}, v{d}, v24, vcc")
            A(f"v_cndmask_b32 v{d+1}, v{d+1}, v24, vcc")
        A(f"v_lshl_add_u32 v{d}, v{d}, 3, s45")
        A(f"v_lshl_add_u32 v{d+1}, v{d+1}, 3, s45")
    A(f"""
s_mov_b32 s50, {LOG2E}
s_mov_b32 s51, {INV2PI}
s_waitcnt vmcnt({21 if EARLY else 4})
v_lshlrev_b32 v10, 16, v10
v_lshlrev_b32 v11, 16, v11
v_mul_f32 v10, s50, v10
v_mul_f32 v11, s50, v11
v_exp_f32 v10, v10
v_exp_f32 v11, v11
s_waitcnt vmcnt({17 if EARLY else 0})
v_lshlrev_b32 v12, 16, v12
v_cvt_pk_bf16_f32 v20, v10, v11
v_lshlrev_b32 v13, 16, v13
v_lshlrev_b32 v14, 16, v14
v_lshlrev_b32 v10, 16, v20
v_and_b32 v11, 0xffff0000, v20
v_mul_f32 v11, v11, v10
v_mul_f32 v12, v12, v10
v_mul_f32_e64 v11, -v11, s50
v_mul_f32 v12, s51, v12
v_add_f32 v10, v10, v10
v_lshlrev_b32 v208, 16, v208
""")
    chL = [] if EARLY else cs_setup(A)
    A.stamp(1)
    X, Pp, Q, R1, R2, E8, PK = 40, 72, 88, 104, 136, 154, 156

    def direct(d, p, conj=False, t=188):
        return [f"v_mul_f32 v{t}, {p}, v11" if p != "1.0" else f"v_mov_b32 v{t}, v11",
                f"v_mul_f32 v{t+1}, {p}, v12" if p != "1.0" else f"v_mov_b32 v{t+1}, v12",
                f"v_exp_f32 v{t}, v{t}",
                f"v_fract_f32 v{t+1}, v{t+1}",
                f"v_cos_f32 v{d}, v{t+1}",
                f"v_sin_f32 v{d+1}, v{t+1}",
                f"v_mul_f32 v{d}, v{d}, v{t}",
                f"v_mul_f32_e64 v{d+1}, v{d+1}, {'-' if conj else ''}v{t}"]
    interleave(A, [direct(E8, "0x41000000", True, 188), direct(Pp + 2, "1.0", False, 190), direct(Q, "0x43000000", False, 192)])
    A(f"v_mul_f32 v{X}, v13, v10\nv_mul_f32_e64 v{X+1}, -v14, v10\nv_mov_b32 v{Pp}, 1.0\nv_mov_b32 v{Pp+1}, 0")
    G = {1: Q, 2: R1, 3: R1 + 8, 4: R1 + 16, 5: R1 + 20, 6: R1 + 24, 7: R1 + 28}
    for j in range(8, 17):
        G[j] = R2 + 2 * (j - 8)
    chX, chP, chG = [], [], []
    for b in range(1, 16):
        chX += cmul(A, X + 2 * b, X + 2 * b - 2, E8)
    for k in range(2, 8):
        chP += cmul(A, Pp + 2 * k, Pp + 2 * k - 2, Pp + 2)
    for k in range(1, 8):
        chP += cmul(A, Q + 2 * k, Pp + 2 * k, Q)
    for j in range(2, 17):
        chG += cmul(A, G[j], G[j - 1], Q)
    interleave(A, [chX, chP, chG, chL])

    def pack_store(base, tile, npos=16, pk=PK):
        for c in range(2):
            for i in range(8):
                if 2 * i + 1 < npos:
                    A(f"v_cvt_pk_bf16_f32 v{pk+8*c+i}, v{base+4*i+c}, v{base+4*i+2+c}")
                elif 2 * i < npos:
                    A(f"v_cvt_pk_bf16_f32 v{pk+8*c+i}, v{base+4*i+c}, 0")
                else:
                    A(f"v_mov_b32 v{pk+8*c+i}, 0")
            A(f"ds_write_b128 v5, {vr(pk+8*c,4)} offset:{tile*4096+c*2048}")
            A(f"ds_write_b128 v6, {vr(pk+8*c+4,4)} offset:{tile*4096+c*2048}")
    pack_store(X, 0, pk=PK)
    pack_store(Pp, 1, pk=PK + 16)
    c1, c2 = [], []
    for i, k in enumerate((2, 4, 6)):
        c1 += cmul(A, R1 + 2 * (1 + i), R1, Pp + 2 * k)
        c2 += cmul(A, R1 + 8 + 2 * (1 + i), R1 + 8, Pp + 2 * k)
    c1 += cmul(A, R1 + 18, R1 + 16, Pp + 8) + cmul(A, R1 + 22, R1 + 20, Pp + 8)
    c2 += cmul(A, R1 + 26, R1 + 24, Pp + 8) + cmul(A, R1 + 30, R1 + 28, Pp + 8)
    interleave(A, [c1, c2])
    pack_store(R2, 3, npos=9, pk=X)
    pack_store(R1, 2, pk=X + 16)
    F = 72
    A("s_waitcnt lgkmcnt(0)")
    for t in (0, 1, 3, 2):
        for s in range(4):
            for h in range(2):
                A(f"ds_read_b64_tr_b16 {vr(F+(t*4+s)*4+2*h,2)}, v7 offset:{t*4096+s*1024+h*512}")
        if t == 1:
            A("s_waitcnt lgkmcnt(0)")
    D = 140
    for n, t in enumerate((1, 3, 2)):
        if n == 1:
            A("s_waitcnt lgkmcnt(8)")
        if n == 2:
            A("s_waitcnt lgkmcnt(0)")
        for s in range(4):
            c = "0" if s == 0 else vr(D + 4 * t, 4)
            A(f"v_mfma_f32_16x16x32_bf16 {vr(D+4*t,4)}, {vr(F+(t*4+s)*4,4)}, {vr(F+s*4,4)}, {c}")
    for q in range(4):
        A(f"ds_write_b32 v16, v{D+4+q} offset:{8*q}")
    for q in range(4):
        A(f"ds_write_b32 v19, v{D+12+q} offset:{128*q}")
    for q in range(4):
        A(f"ds_write_b32 v{17+q//2}, v{D+8+q} offset:{8*(q&1)}")
    A(f"""
s_mul_i32 s44, s52, {4*KCOPY}
s_add_u32 s44, s44, {KC0}
s_mul_i32 s45, s52, {UXS}
s_add_u32 s45, s45, {UX0}
v_sub_u32 v36, 15, v8
v_and_b32 v37, 3, v36
v_lshrrev_b32 v36, 2, v36
v_mul_u32_u24 v200, {KCOPY}, v37
v_lshl_add_u32 v200, v36, 3, v200
v_lshl_add_u32 v200, v9, 4, v200
s_lshl_b32 s53, s47, 8
s_sub_u32 s54, s44, s53
v_add_u32 v200, s54, v200
v_lshlrev_b32 v201, 5, v8
v_lshl_add_u32 v202, v9, 3, v201
v_lshl_add_u32 v201, v9, 4, v201
s_sub_u32 s54, s45, s53
v_add_u32 v201, s54, v201
s_lshl_b32 s53, s47, 11
s_add_u32 s54, s53, s44
v_lshl_add_u32 v203, v2, 5, s54
s_add_u32 s54, s53, s45
s_add_u32 s54, s54, 512
v_add_u32 v202, s54, v202
v_and_b32 v36, 1, v9
v_lshrrev_b32 v37, 1, v9
v_lshlrev_b32 v204, 5, v8
v_lshl_add_u32 v204, v36, 9, v204
v_lshl_add_u32 v204, v37, 4, v204
v_mov_b32 v32, 0
v_mov_b32 v33, 0
v_mov_b32 v34, 0
v_mov_b32 v35, 0
v_lshl_add_u32 v36, v2, 4, s45
v_subrev_u32 v37, 32, v2
v_lshrrev_b32 v38, 1, v37
v_and_b32 v37, 1, v37
v_mul_u32_u24 v38, {KCOPY}, v38
v_lshl_add_u32 v38, v37, 4, v38
s_add_u32 s54, s44, 4096
v_add_u32 v38, s54, v38
v_cmp_gt_u32 vcc, 32, v2
v_cndmask_b32 v36, v38, v36, vcc
s_waitcnt lgkmcnt(0)
s_barrier
""")
    A.stamp(2)
    Gt = 40
    for i in range(19):
        A(f"ds_read_b64 {vr(Gt+2*i,2)}, v{GA+i}")
        if i == 13:
            A("s_waitcnt lgkmcnt(3)")
            for k in range(11):
                A(f"v_add_f32 v{Gt+2*k}, v{Gt+2*k}, v{Gt+2*k+1}")
    A("s_mov_b32 exec_hi, 0xff\nds_write_b128 v36, v[32:35]\ns_mov_b64 exec, -1")
    val = lambda k: Gt + 2 * k
    O = 80
    for u in range(2):
        if u == 1:
            A("s_waitcnt lgkmcnt(5)")
            for k in range(11, 19):
                A(f"v_add_f32 v{Gt+2*k}, v{Gt+2*k}, v{Gt+2*k+1}")
        for s in range(4):
            o = O + 16 * u + 4 * s
            for i in range(4):
                A(f"v_cvt_pk_bf16_f32 v{o+i}, v{val(8*u+s+2*i)}, v{val(8*u+s+2*i+1)}")
            A(f"ds_write_b128 v203, {vr(o,4)} offset:{s*KCOPY+16*u}")
    A.srd_off(24, 64, WS_HT, 0x200000)
    A("s_mov_b32 s28, 0xffff0000\ns_waitcnt vmcnt(1)")
    for r in range(16):
        d = 24 + 2 * (r % 2)
        if r < 2:
            A(f"v_lshlrev_b32 v{d}, 16, v{232+r}\nv_and_b32 v{d+1}, s28, v{232+r}")
        else:
            t = 28 + 2 * (r % 2)
            A(f"v_lshlrev_b32 v{t}, 16, v{232+r}\nv_and_b32 v{t+1}, s28, v{232+r}")
            A(f"v_pk_add_f32 {vr(d,2)}, {vr(d,2)}, {vr(t,2)}")
    A(f"""
v_pk_add_f32 v[24:25], v[24:25], v[26:27]
v_lshlrev_b32 v28, 3, v0
v_add_u32 v28, {CSP}, v28
ds_write_b64 v28, v[24:25]
v_lshlrev_b32 v209, 3, v2
v_add_u32 v212, {CSP}, v209
""")
    A(f"""
s_lshl_b32 s51, s17, 12
s_add_u32 s51, s51, s53
s_lshr_b32 s50, s19, 4
s_lshl_b32 s50, s50, 8
s_add_u32 s50, s50, {MI_C2}
s_lshl_b32 s54, s3, 12
s_add_u32 s54, s54, {TT}
v_lshl_add_u32 v205, v2, 4, s54
s_xor_b32 s54, s3, 1
s_lshl_b32 s54, s54, 12
s_add_u32 s54, s54, {TT}
v_lshl_add_u32 v206, v2, 4, s54
s_lshl_b32 s54, s52, 2
s_add_u32 s54, s54, {SY}
v_mov_b32 v207, s54
v_mov_b32 v210, {SY}
v_mov_b32 v211, 1
s_waitcnt lgkmcnt(0)
""")
    A.stamp(3)
    A("s_barrier")
    A.stamp(4)
    A(f"""
s_cmp_lg_u32 s3, 0
s_cbranch_scc1 M_nocs
s_cmp_ge_u32 s2, 224
s_cbranch_scc1 M_nocs
ds_read_b64 v[24:25], v212
ds_read_b64 v[26:27], v212 offset:512
ds_read_b64 v[28:29], v212 offset:1024
ds_read_b64 v[30:31], v212 offset:1536
s_waitcnt lgkmcnt(0)
v_pk_add_f32 v[24:25], v[24:25], v[26:27]
v_pk_add_f32 v[28:29], v[28:29], v[30:31]
v_pk_add_f32 v[214:215], v[24:25], v[28:29]
buffer_store_dwordx2 v[214:215], v209, s[40:43], s55 offen sc1
M_nocs:
""")
    ACC = 8
    FA = [64, 128]

    def reads(w, buf):
        L = []
        fa, fb = FA[buf], FA[buf] + 32
        for i in range(8):
            L.append(f"ds_read_b128 {vr(fb+4*i,4)}, v201 offset:{480+512*i-64*w}")
            L.append(f"ds_read_b64 {vr(fa+4*i,2)}, v200 offset:{4032-64*w-512*i}")
            L.append(f"ds_read_b64 {vr(fa+4*i+2,2)}, v200 offset:{4032-64*w-512*i+8}")
        return L
    order = []
    for m in range(8):
        for i in range(m + 1):
            for d in range(m + 1):
                if max(i, d) == m and i + d <= 7:
                    order.append((m, i, d))
    started = set()
    cur = reads(0, 0)
    for r in cur[:15]:
        A(r)
    pend = cur[15:]
    issued = 15
    for w in range(4):
        buf = w & 1
        fa, fb = FA[buf], FA[buf] + 32
        nxt = reads(w + 1, buf ^ 1) if w < 3 else []
        if w == 3:
            nxt = [f"ds_read_b64 {vr(64+2*t,2)}, v202 offset:{512*t}" for t in range(4)]
            nxt += [f"ds_read_b64 {vr(72+2*t,2)}, v202 offset:{2*UXS+512*t}" for t in range(4)]
        queue = pend + nxt
        base = 24 * w
        lastm = -1
        for n, (m, i, d) in enumerate(order):
            if m != lastm:
                needn = base + 3 * (m + 1)
                while issued < needn:
                    A(queue.pop(0)); issued += 1
                out = issued - needn
                if w == 0 or m in (0, 4):
                    if w > 0:
                        tgt = base + (15 if m == 0 else 24)
                        out = issued - tgt
                    A(f"s_waitcnt lgkmcnt({min(out, 15)})")
                lastm = m
            t = i + d
            c = vr(ACC + 4 * t, 4) if t in started else "0"
            started.add(t)
            A(f"v_mfma_f32_16x16x32_bf16 {vr(ACC+4*t,4)}, {vr(fa+4*i,4)}, {vr(fb+4*d,4)}, {c}")
            if queue and (w == 0 or n >= 2):
                A(queue.pop(0)); issued += 1
        pend = queue
        assert not pend
    A.stamp(5)
    A("s_mov_b32 s28, 0xffff0000\ns_cmp_eq_u32 s47, 0\ns_cbranch_scc1 M_x0")
    for t in range(4):
        A(f"ds_write_b128 v205, {vr(ACC+4*t,4)} offset:{1024*t}")
    A("s_nop 1")
    for i in range(16):
        A(f"v_mov_b32 v{ACC+i}, v{ACC+16+i}")
    A("s_branch M_x1\nM_x0:\ns_nop 7")
    for t in range(4):
        A(f"ds_write_b128 v205, {vr(ACC+16+4*t,4)} offset:{1024*t}")
    A(f"M_x1:\ns_mov_b64 exec, 1\nds_add_u32 v207, v211 offset:{S_PAIR}\ns_mov_b64 exec, -1\ns_waitcnt lgkmcnt(5)")
    for i in range(8):
        A(f"v_lshlrev_b32 v{88+2*i}, 16, v{64+i}")
        A(f"v_and_b32 v{89+2*i}, s28, v{64+i}")
    for i in range(16):
        A(f"v_mul_f32 v{88+i}, v{88+i}, v208")
    for i in range(8):
        A(f"v_cvt_pk_bf16_f32 v{64+i}, v{88+2*i}, v{89+2*i}")
    for i in range(8):
        A(f"v_lshlrev_b32 v{88+2*i}, 16, v{64+i}")
        A(f"v_and_b32 v{89+2*i}, s28, v{64+i}")
        A(f"v_lshlrev_b32 v{104+2*i}, 16, v{72+i}")
        A(f"v_and_b32 v{105+2*i}, s28, v{72+i}")
    lds_spin(A, "M_pair", 207, S_PAIR, 2, 120,
             extra="\n".join(f"ds_read_b128 {vr(128+4*t,4)}, v206 offset:{1024*t}" for t in range(4)))
    for i in range(16):
        A(f"v_add_f32 v{ACC+i}, v{ACC+i}, v{128+i}")

    def rnd(base):
        for i in range(8):
            A(f"v_cvt_pk_bf16_f32 v{64+i}, v{base+2*i}, v{base+2*i+1}")
        for i in range(8):
            A(f"v_lshlrev_b32 v{base+2*i}, 16, v{64+i}")
            A(f"v_and_b32 v{base+2*i+1}, s28, v{64+i}")
    rnd(ACC)
    for i in range(16):
        A(f"v_add_f32 v{ACC+i}, v{ACC+i}, v{88+i}")
    rnd(ACC)
    for i in range(16):
        A(f"v_add_f32 v{ACC+i}, v{ACC+i}, v{104+i}")
    for i in range(8):
        A(f"v_cvt_pk_bf16_f32 v{64+i}, v{ACC+2*i}, v{ACC+2*i+1}")
    for p in range(2):
        A(f"v_permlane16_swap_b32 v{64+4*p}, v{66+4*p}")
        A(f"v_permlane16_swap_b32 v{65+4*p}, v{67+4*p}")
    for p in range(2):
        A(f"buffer_store_dwordx4 {vr(64+4*p,4)}, v204, s[24:27], s51 offen offset:{1024*p} sc1")
    A(f"""
v_mov_b32 v120, 0
s_waitcnt vmcnt(0)
s_mov_b64 exec, 1
ds_add_rtn_u32 v121, v210, v211 offset:{S_CNT2}
s_waitcnt lgkmcnt(0)
v_cmp_ne_u32 vcc, 3, v121
s_nop 4
s_cbranch_vccnz M_nosig2
""")
    grid_arrive(A, "M_nosig2", 50, 120, 121)
    A("M_nosig2:\ns_mov_b64 exec, -1")


def ids(A):
    A(f"""
s_load_dwordx8 s[4:11], s[0:1], 64
s_and_b32 s61, s2, 3
s_bfe_u32 s62, s2, 0x10002
s_lshr_b32 s66, s2, 3
s_and_b32 s12, s3, 3
s_lshl_b32 s16, s61, 2
s_and_b32 s54, s66, 3
s_add_u32 s16, s16, s54
s_mul_i32 s17, s62, 7
s_lshr_b32 s54, s66, 2
s_add_u32 s17, s17, s54
s_lshl_b32 s52, s12, 11
s_lshl_b32 s48, s16, 8
s_lshl_b32 s49, s17, 8
s_waitcnt lgkmcnt(0)
""")


def mega(A):
    kf2.HSC = "sc1"
    slot, issue, need = kf2.schedule(PRE_SLOTS)
    if os.environ.get("KFV"):
        for b in range(-2, kf2.NB):
            print(b, [(u, slot[u]) for u in issue[b]])
    A(f"""
.globl {NAME}
.p2align 8
.type {NAME},@function
{NAME}:
""")
    A.kidx = 0
    A.stamp(0)
    A("""
s_cmp_ge_u32 s2, 256
s_cbranch_scc1 M_done
""")
    if os.environ.get("CPF", "1") == "1":
        A(f"""
s_cmp_ge_u32 s2, {os.environ.get("CPFN", "16")}
s_cbranch_scc1 M_nocpf
s_getpc_b64 s[4:5]
M_pc:
v_lshlrev_b32 v1, 7, v0
v_min_u32 v1, M_done-M_pc, v1
global_load_dword v255, v1, s[4:5]
M_nocpf:
""")
    A("""
v_lshrrev_b32 v1, 6, v0
v_and_b32 v2, 63, v0
v_readfirstlane_b32 s3, v1
s_mov_b32 s68, 0
s_and_b32 s12, s3, 3
s_cmp_lt_u32 s3, 4
s_cbranch_scc1 M_C
""")
    front_L(A)
    A.flush(0)
    A.kidx = 1
    A.stamp(0)
    ids(A)
    A.srd_off(20, 64, WS_HT, 0x200000)
    A.srd(24, "s4", "s5", 1835008)
    A.srd(28, "s6", "s7", 1835008)
    kf2.setup_g1_dma(A)
    kf2.setup_g2_ids(A)
    kf2.setup_loader_rest(A)
    A(f"s_mov_b32 s67, {MI_C2}\ns_cmp_ge_u32 s66, 28\ns_cbranch_scc1 M_SL")
    GL = Grp(A)
    for u in issue[-2]:
        kf2.dma(GL, u, slot)
    grid_wait(A, "M_g2", "s67", 7, S_FLAG2, 44)
    A.stamp(1)
    for u in issue[-1]:
        kf2.dma(GL, u, slot)
    GL.wait(need[0]); A("s_barrier")
    kf2.loader_ticks(GL, slot, issue, need, 0, "L")
    A.end()
    A("; @reset\nM_SL:")
    grid_wait(A, "M_g3", "s67", 7, S_FLAG2, 44)
    A("s_branch M_S")
    A("; @reset\nM_C:")
    A.kidx = 0
    front_C(A)
    A.flush(0)
    A.kidx = 1
    A.stamp(0)
    ids(A)
    kf2.setup_g2_ids(A)
    kf2.setup_compute(A, slot)
    A("s_cmp_ge_u32 s66, 28\ns_cbranch_scc1 M_SC")
    kf2.compute_main(A, slot, mega=True)
    A("; @reset\nM_SC:")
    A.srd_off(20, 64, WS_HT, 0x200000)
    A("M_S:\ns_waitcnt lgkmcnt(0)\ns_barrier")
    kf2.stats_wg(A, mega=True)
    A.stamp(1)
    A("s_barrier")
    A("s_cmp_lt_u32 s3, 4\ns_cbranch_scc0 M_SL2")
    A.srd(32, "s8", "s9", 1835008)
    A(f"""
v_lshlrev_b32 v30, 10, v0
s_and_b32 s54, s2, 4
s_and_b32 s61, s66, 3
s_add_u32 s54, s54, s61
s_lshl_b32 s54, s54, 7
""")
    for i in range(7):
        A(f"buffer_load_dword v{32+i}, v30, s[32:35], s54 offen\ns_add_u32 s54, s54, 0x40000")
    A("s_branch KF_P2\nM_SL2:")
    kf2.s_loader(A, slot, issue, need)
    A("M_done:\ns_endpgm")
    return dict(name=NAME, grid=256, block=512, lds=LDS, vgpr=256, sgpr=70)
```

```python
import sys
from asmlib import *
import k1, k2, k3, k4
import kf2 as kf
NAME = "sequential_preLN__ssm_conv_s4d__glu_gated_swiglu__prompt"
ref = open(f"cdna_kernels/{NAME}.s.ref").read().split("\n")
head = [l for l in ref if l.startswith(";") and "@launch" not in l and "Override" not in l and "grid=ceil" not in l]
A = Asm()
import os, mega
MEGA = os.environ.get('MEGA', '1') == '1'
ks = [mega.mega(A)] if MEGA else [k1.k1(A), k2.k2(A), kf.kf(A)]
import os, re
EXP = os.environ.get("EXP", "").split(",")
def between(lines, a, b, f):
    out = []; on = False
    for l in lines:
        if a in l: on = True
        if b in l: on = False
        if on:
            l = f(l)
            if l is None: continue
        out.append(l)
    return out
L = A.lines
if "nostats" in EXP:
    L = between(L, "@loop_begin K3_st", "@loop_end K3_st", lambda l: None if re.search(r"v_pk_|v_lshlrev|v_and|ds_read", l) else l)
if "nodma" in EXP:
    for w in ("K3_ld0", "K3_ld1", "K4_ld0", "K4_ld1"):
        L = between(L, "@loop_begin " + w, "@loop_end " + w, lambda l: None if "buffer_load" in l else l)
if "nowdma" in EXP:
    for w in ("K3_ld0", "K3_ld1"):
        L = between(L, "@loop_begin " + w, "@loop_end " + w, lambda l: None if "buffer_load" in l and "s[20:23]" not in l else l)
    L = between(L, "@loop_begin K4_ld1", "@loop_end K4_ld1", lambda l: None if "buffer_load" in l else l)
if "nohdma" in EXP:
    for w in ("K3_ld0", "K4_ld0"):
        L = between(L, "@loop_begin " + w, "@loop_end " + w, lambda l: None if "buffer_load" in l and "s[20:23]" in l else l)
if "nomfma" in EXP:
    for w in ("K3_c", "K4_c"):
        L = between(L, "@loop_begin " + w, "@loop_end " + w, lambda l: None if "v_mfma" in l else l)
if "noread" in EXP:
    for w in ("K3_c", "K4_c"):
        L = between(L, "@loop_begin " + w, "@loop_end " + w, lambda l: None if "ds_read" in l else l)
if "kf_nodma" in EXP:
    L = between(L, "kf_kernel:", "KF_done:", lambda l: None if re.search(r"buffer_load.* lds", l) else re.sub(r"vmcnt\(\d+\)", "vmcnt(0)", l))
if "kf_nocomp" in EXP:
    L = between(L, "kf_kernel:", "KF_S:", lambda l: None if re.search(r"v_mfma|ds_read_b64_tr|v_exp|v_rcp|v_fma|v_mul_f32", l) else l)
if "kf_noepi" in EXP:
    L = between(L, "kf_kernel:", "KF_S:", lambda l: None if re.search(r"v_exp|v_rcp|v_fma|v_mul_f32", l) else l)
body = fix_hazards(L)
LIST = not MEGA or os.environ.get('LIST') == '1' or STAMPS
out = head + [f"; @launch {('kernel=' + k['name'] + ' ') if LIST else ''}grid=({k['grid']},1,1) block=({k['block']},1,1) lds={k['lds']}" for k in ks]
out += ['.amdgcn_target "amdgcn-amd-amdhsa--gfx950"', ".text"] + body + ['.section .rodata,"a"']
out += [kernel_desc(k['name'], k['vgpr'], k['sgpr']) for k in ks]
path = sys.argv[1] if len(sys.argv) > 1 else f"cdna_kernels/{NAME}.s"
open(path, "w").write("\n".join(out) + "\n")
print("wrote", path, len(body), "lines")
```

```python
import sys
WS_STAMP = 0x4000000
def mk(src, dst, ki, idx, op, base=6000):
    s = open(src).read()
    off = WS_STAMP + ki*0x40000 + idx*4
    t = s.replace('.amdgcn_target', "; @launch kernel=probe_kernel grid=(1,1,1) block=(64,1,1) lds=0\n" + '.amdgcn_target', 1)
    body = []
    for i in range(32):
        body.append(f"    buffer_load_dword v{8+i}, v1, s[8:11], s12 offen\n    s_add_u32 s12, s12, 2048")
    body.append("    s_waitcnt vmcnt(0)\n    v_readfirstlane_b32 s14, v8\n    s_nop 4")
    for i in range(32):
        body.append(f"    v_subrev_u32 v{8+i}, s14, v{8+i}")
    for i in range(1, 32):
        body.append(f"    v_{op}_i32 v8, v8, v{8+i}")
    body.append("    s_nop 4\n    v_readlane_b32 s15, v8, 0")
    for l in range(1, 64):
        body.append(f"    v_readlane_b32 s16, v8, {l}\n    s_nop 1\n    s_{op}_i32 s15, s15, s16")
    body = "\n".join(body)
    t = t.replace('.section .rodata,"a"', f'''.globl probe_kernel
.p2align 8
.type probe_kernel,@function
probe_kernel:
    s_cmp_ge_u32 s2, 1
    s_cbranch_scc1 P_done
    s_load_dwordx2 s[4:5], s[0:1], 104
    s_waitcnt lgkmcnt(0)
    s_mov_b32 s8, s4
    s_mov_b32 s9, s5
    s_mov_b32 s10, 0x8000000
    s_mov_b32 s11, 0x20000
    s_mov_b32 s12, {off}
    v_lshlrev_b32 v1, 5, v0
{body}
    s_add_u32 s18, s14, s15
    s_add_u32 s18, s18, {base}
    s_mov_b32 s12, 0
P_loop:
    s_memrealtime s[20:21]
    s_waitcnt lgkmcnt(0)
    s_add_u32 s12, s12, 1
    s_cmp_gt_u32 s12, 100000
    s_cbranch_scc1 P_done
    s_sub_u32 s20, s20, s18
    s_cmp_lt_i32 s20, 0
    s_cbranch_scc1 P_loop
P_done:
    s_endpgm
.section .rodata,"a"
.p2align 6
.amdhsa_kernel probe_kernel
  .amdhsa_next_free_vgpr 48
  .amdhsa_next_free_sgpr 32
  .amdhsa_accum_offset 48
  .amdhsa_group_segment_fixed_size 0
  .amdhsa_kernarg_size 112
  .amdhsa_user_sgpr_count 2
  .amdhsa_user_sgpr_kernarg_segment_ptr 1
  .amdhsa_system_sgpr_workgroup_id_x 1
.end_amdhsa_kernel''', 1)
    open(dst, "w").write(t)
src = sys.argv[1]
for n, spec in enumerate(sys.argv[2:]):
    ki, idx, op = spec.split(",")
    mk(src, f"probe{n}.s", int(ki), int(idx), op)
```
